```python
import torch

def _softmax(x, axis=-1):
    return torch.softmax(x, dim=axis)

def _gelu(x):
    return torch.nn.functional.gelu(x, approximate='tanh')

def _silu(x):
    return torch.nn.functional.silu(x)

def _sigmoid(x):
    return torch.sigmoid(x)

def _layernorm(x, axis=-1, eps=1e-05):
    m = x.mean(dim=axis, keepdim=True)
    v = x.var(dim=axis, keepdim=True, unbiased=False)
    return (x - m) / torch.sqrt(v + eps)

def _scatter_add(tgt, idx, src, axis=0):
    return tgt.clone().index_add_(axis, idx, src)

def _segment_sum(src, seg, n):
    out = torch.zeros((n,) + src.shape[1:], dtype=src.dtype)
    return out.index_add_(0, seg, src)

def _pad(x, pw):
    flat = tuple((v for pair in reversed(pw) for v in pair))
    return torch.nn.functional.pad(x, flat)
kernel_name = 'adaLN_cond__gqa_block_cached__geglu_ffn__decode'

def setup_inputs():

    _w = lambda a: (lambda t: t.to(torch.bfloat16) if t.is_floating_point() else t)(torch.as_tensor(a))

    def _A_setup():
        B, Sq, D = (4, 1, 512)
        Hq, Hkv, Sk, Dh = (32, 8, 8192, 128)
        assert Hq % Hkv == 0, (Hq, Hkv)
        return {'x': _w((lambda *s: torch.randn(*s, dtype=torch.bfloat16) * 0.1)(B, Sq, D)), 'k_cache': _w((lambda *s: torch.randn(*s, dtype=torch.bfloat16) * 0.8)(B, Hkv, Sk, Dh)), 'v_cache': _w((lambda *s: torch.randn(*s, dtype=torch.bfloat16) * 1.6)(B, Hkv, Sk, Dh)), 'wq': _w((lambda *s: torch.randn(*s, dtype=torch.bfloat16) * 0.8)(D, Hq * Dh) * D ** (-0.5)), 'wo': _w((lambda *s: torch.randn(*s, dtype=torch.bfloat16) * 1.6)(Hq * Dh, D) * (Hq * Dh) ** (-0.5))}
    _A_in = _A_setup()

    def _B_setup():
        B, S, D, F = (4, 1, 512, 1792)
        return {'x': _w((lambda *s: torch.randn(*s, dtype=torch.bfloat16) * 0.1)(B, S, D)), 'w_gate': _w((lambda *s: torch.randn(*s, dtype=torch.bfloat16) * 0.1)(D, F)), 'w_up': _w((lambda *s: torch.randn(*s, dtype=torch.bfloat16) * 0.1)(D, F)), 'w_down': _w((lambda *s: torch.randn(*s, dtype=torch.bfloat16) * 0.1)(F, D))}
    _B_in = _B_setup()
    return {'A_x': _A_in['x'], 'A_k_cache': _A_in['k_cache'], 'A_v_cache': _A_in['v_cache'], 'A_wq': _A_in['wq'], 'A_wo': _A_in['wo'], 'B_x': _B_in['x'], 'B_w_gate': _B_in['w_gate'], 'B_w_up': _B_in['w_up'], 'B_w_down': _B_in['w_down'], 'c': _w((lambda *s: torch.randn(*s, dtype=torch.bfloat16) * 0.8)(4, 512) * 8.0), 'w_mod': _w((lambda *s: torch.randn(*s, dtype=torch.bfloat16) * 0.8)(512, 6 * 512) * 512 ** (-0.5) * 8.0)}

def reference(A_x, A_k_cache, A_v_cache, A_wq, A_wo, B_x, B_w_gate, B_w_up, B_w_down, c, w_mod):

    def _A_ref(x, k_cache, v_cache, wq, wo):
        B, Sq, D = x.shape
        Hq, Dh = (32, 128)
        Hkv = k_cache.shape[1]
        rep = Hq // Hkv
        q = (lambda x, *d: x.permute(*d))((x @ wq).reshape(B, Sq, Hq, Dh), 0, 2, 1, 3)
        k = (lambda x, n, axis: torch.repeat_interleave(x, n, dim=axis))(k_cache, rep, axis=1)
        v = (lambda x, n, axis: torch.repeat_interleave(x, n, dim=axis))(v_cache, rep, axis=1)
        scores = torch.einsum('bhqd,bhkd->bhqk', q, k) * Dh ** (-0.5)
        p = _softmax(scores, axis=-1)
        o = torch.einsum('bhqk,bhkd->bhqd', p, v)
        return (lambda x, *d: x.permute(*d))(o, 0, 2, 1, 3).reshape(B, Sq, Hq * Dh) @ wo

    def _B_ref(x, w_gate, w_up, w_down):
        return _gelu(x @ w_gate) * (x @ w_up) @ w_down
    x = A_x
    mod = (_silu(c) @ w_mod).reshape(c.shape[0], 6, 1, -1)
    sa, ca, ga, sb, cb, gb = (mod[:, 0].clone(), mod[:, 1].clone(), mod[:, 2].clone(), mod[:, 3].clone(), mod[:, 4].clone(), mod[:, 5].clone())
    h = _layernorm(x, axis=-1) * (1 + ca) + sa
    x = x + ga * _A_ref(h, A_k_cache, A_v_cache, A_wq, A_wo)
    h = _layernorm(x, axis=-1) * (1 + cb) + sb
    x = x + gb * _B_ref(h, B_w_gate, B_w_up, B_w_down)
    return x
```

```python
import re

TRANS = ('v_exp_f32', 'v_log_f32', 'v_rcp_f32', 'v_rsq_f32', 'v_sqrt_f32', 'v_sin_f32', 'v_cos_f32')

def regs_of(tok):
    tok = tok.strip()
    tok = tok.lstrip('-')
    m = re.fullmatch(r'abs\((.*)\)|\|(.*)\|', tok)
    if m: tok = m.group(1) or m.group(2)
    m = re.fullmatch(r'([vs])(\d+)', tok)
    if m: return [(m.group(1), int(m.group(2)))]
    m = re.fullmatch(r'([vs])\[(\d+):(\d+)\]', tok)
    if m: return [(m.group(1), i) for i in range(int(m.group(2)), int(m.group(3)) + 1)]
    if tok == 'vcc': return [('s', 106), ('s', 107)]
    if tok == 'vcc_lo': return [('s', 106)]
    if tok == 'vcc_hi': return [('s', 107)]
    if tok == 'exec': return [('s', 126), ('s', 127)]
    return []

def split_ops(s):
    out, depth, cur = [], 0, ''
    for ch in s:
        if ch in '[(': depth += 1
        if ch in '])': depth -= 1
        if ch == ',' and depth == 0:
            out.append(cur); cur = ''
        else:
            cur += ch
    if cur.strip(): out.append(cur)
    return [o.strip() for o in out]

class Ins:
    def __init__(self, text):
        self.text = text
        t = text.split(';')[0].strip()
        parts = t.split(None, 1)
        self.op = parts[0]
        rest = parts[1] if len(parts) > 1 else ''
        ops = split_ops(rest)
        mods = ''
        if ops:
            last = ops[-1].split(None, 1)
            ops[-1] = last[0]
            if len(last) > 1: mods = last[1]
        self.ops, self.mods = ops, mods
        op = self.op
        self.kind = 'other'
        self.wr, self.rd = [], []
        self.mfma_c = []
        self.mfma_ab = []
        self.store_data = []
        self.states = 1
        R = [regs_of(o) for o in ops]
        flat = lambda l: [x for y in l for x in y]
        if op == 's_nop':
            self.kind = 'nop'; self.states = int(ops[0], 0) + 1
        elif op.startswith('v_mfma'):
            self.kind = 'mfma'
            self.wr = R[0]; self.mfma_ab = R[1] + R[2]; self.mfma_c = R[3]; self.rd = R[1] + R[2] + R[3]
            assert '16x16x32_bf16' in op, op
        elif op.startswith('v_'):
            self.kind = 'valu'
            self.dpp = ('_dpp' in op) or ('quad_perm' in mods) or ('row_' in mods)
            self.trans = any(op.startswith(x) for x in TRANS)
            self.perml = op.startswith('v_permlane')
            self.rdlane = op.startswith('v_readlane') or op.startswith('v_readfirstlane')
            if self.perml:
                self.wr = R[0] + R[1]; self.rd = R[0] + R[1]
            elif op.startswith('v_cmp'):
                assert not op.startswith('v_cmpx')
                self.wr = R[0]; self.rd = flat(R[1:])
            elif re.match(r'v_(add|sub|subrev)_co_u32', op):
                self.wr = R[0] + R[1]; self.rd = flat(R[2:])
            elif re.match(r'v_(addc|subb)_co_u32', op):
                self.wr = R[0] + R[1]; self.rd = flat(R[2:])
            else:
                self.wr = R[0]; self.rd = flat(R[1:])
                if op.startswith('v_fmac') or self.dpp or op.startswith('v_writelane'):
                    self.rd = self.rd + R[0]
        elif op.startswith('buffer_load') or op.startswith('global_load'):
            self.kind = 'vmem'
            self.wr = R[0]; self.rd = flat(R[1:])
            if 'd16' in op: self.rd = self.rd + R[0]
        elif op.startswith('buffer_store') or op.startswith('buffer_atomic'):
            self.kind = 'vmem'
            self.rd = flat(R)
            if op.endswith('x4') or op.endswith('x3'): self.store_data = R[0]
            if op.startswith('buffer_atomic') and 'sc0' in mods: self.wr = R[0]
        elif op.startswith('ds_read') or op.startswith('ds_bpermute') or op.startswith('ds_swizzle'):
            self.kind = 'ds'; self.wr = R[0]; self.rd = flat(R[1:])
        elif op.startswith('ds_'):
            self.kind = 'ds'; self.rd = flat(R)
        elif op.startswith('s_'):
            self.kind = 'salu'
            if op.startswith(('s_cmp', 's_cbranch', 's_branch', 's_waitcnt', 's_barrier', 's_sleep', 's_endpgm', 's_setprio', 's_bitcmp')):
                self.rd = flat(R)
            else:
                self.wr = R[0] if R else []; self.rd = flat(R[1:])
                if 'saveexec' in op: self.wr = self.wr + [('s', 126), ('s', 127)]

def need(ins, st):
    req = 0
    def chk(ev, reg, n):
        nonlocal req
        d = st.get((ev, reg))
        if d is not None and d < n: req = max(req, n - d)
    k = ins.kind
    vr = [r for r in ins.rd if r[0] == 'v']; vw = [r for r in ins.wr if r[0] == 'v']
    sr = [r for r in ins.rd if r[0] == 's']
    if k == 'mfma':
        for r in vr: chk('valu_w', r, 2)
        for r in ins.mfma_ab: chk('mfma_w', r, 8)
        cset = tuple(ins.mfma_c)
        for r in ins.mfma_c:
            d = st.get(('mfma_w', r))
            if d is not None and st.get(('mfma_dset', r)) != cset: chk('mfma_w', r, 6)
        for r in vw:
            if r not in ins.mfma_c: chk('mfma_w', r, 8)
            chk('store_d', r, 2)
    elif k == 'valu':
        for r in vr + vw: chk('mfma_w', r, 8)
        for r in vw:
            chk('mfma_c', r, 3); chk('store_d', r, 2)
        if ins.dpp or ins.perml:
            for r in vr: chk('valu_w', r, 2)
        if ins.rdlane:
            for r in vr: chk('valu_w', r, 1)
            for r in sr: chk('valu_sw', r, 4)
        if not ins.trans:
            for r in vr: chk('trans_w', r, 1)
        for r in sr: chk('valu_sw', r, 2)
    elif k in ('vmem', 'ds'):
        for r in vr + vw: chk('mfma_w', r, 8)
        for r in vw: chk('store_d', r, 2)
        for r in vr: chk('trans_w', r, 1)
        if k == 'vmem':
            for r in sr: chk('valu_sw', r, 5)
    elif k == 'salu':
        for r in sr: chk('valu_sw', r, 1)
    return req

def advance(st, n):
    for key in list(st.keys()):
        if key[0] == 'mfma_dset': continue
        st[key] += n
        if st[key] > 24:
            del st[key]
            if key[0] == 'mfma_w': st.pop(('mfma_dset', key[1]), None)

def record(ins, st):
    k = ins.kind
    for r in ins.wr:
        for ev in ('valu_w', 'trans_w', 'valu_sw'):
            st.pop((ev, r), None)
    if k == 'mfma':
        for r in ins.wr:
            st[('mfma_w', r)] = 0; st[('mfma_dset', r)] = tuple(ins.wr)
        for r in ins.mfma_c: st[('mfma_c', r)] = 0
    elif k == 'valu':
        for r in ins.wr:
            if r[0] == 'v':
                st[('valu_w', r)] = 0
                if ins.trans: st[('trans_w', r)] = 0
            else:
                st[('valu_sw', r)] = 0
    for r in ins.store_data: st[('store_d', r)] = 0

def merge(a, b):
    out = dict(a)
    for k, v in b.items():
        if k[0] == 'mfma_dset':
            if k in out and out[k] != v: out[k] = None
            else: out[k] = v
        elif k in out: out[k] = min(out[k], v)
        else: out[k] = v
    return out

def fix_hazards(lines):
    saved = {}
    for it in range(3):
        out = []; st = {}; reachable = True; changed = False
        for ln in lines:
            t = ln.split(';')[0].strip()
            if not t or t.startswith('.'):
                out.append(ln); continue
            if t.endswith(':'):
                lab = t[:-1]
                if lab in saved:
                    st = merge(st, saved[lab]) if reachable else dict(saved[lab])
                elif not reachable:
                    st = {}
                reachable = True
                out.append(ln); continue
            ins = Ins(ln)
            n = need(ins, st)
            while n > 0:
                c = min(n, 16)
                out.append(f'  s_nop {c-1}')
                advance(st, c); n -= c
            out.append(ln)
            advance(st, ins.states)
            record(ins, st)
            if ins.op.startswith('s_cbranch') or ins.op == 's_branch':
                lab = ins.ops[0]
                new = merge(saved[lab], st) if lab in saved else dict(st)
                if saved.get(lab) != new: changed = True
                saved[lab] = new
                if ins.op == 's_branch': reachable = False
            if ins.op == 's_endpgm': reachable = False
        if not changed: break
    return out

class VM:
    def __init__(self, emit):
        self.e = emit; self.q = []
    def issue(self, tag): self.q.append(tag)
    def wait(self, tag):
        if tag not in self.q: return
        idx = len(self.q) - 1 - self.q[::-1].index(tag)
        n = len(self.q) - 1 - idx
        assert n <= 63
        self.e(f's_waitcnt vmcnt({n})')
        self.q = self.q[idx + 1:]
    def throttle(self, depth):
        if len(self.q) > depth:
            self.e(f's_waitcnt vmcnt({depth})')
            self.q = self.q[len(self.q) - depth:]
    def all(self):
        self.e('s_waitcnt vmcnt(0)'); self.q = []
```

```python
import sys
from asmlib import fix_hazards, VM
NAME = 'adaLN_cond__gqa_block_cached__geglu_ffn__decode'

WS_MOD, WS_X2, WS_Q, WS_BLK, WS_STAMP = 0x0, 0x8000, 0x10000, 0x20000, 0x200000
LDS_BYTES = 36864
BLK_OP, BLK_ML, BLK_Y, BLK_Z, BLK_SZ = 0x0, 0x3800, 0x4000, 0x6000, 0x8000
WS_BYTES = 0x400000
DBG_H, DBG_M, DBG_X, DBG_Q = 0, 4, 8, 128
LOG2E = 0x3fb8aa3b
SCALE = 0x3db504f3
NEG_INF = 0xff800000
MFMA = 'v_mfma_f32_16x16x32_bf16'

HEADER = open('cdna_kernels/' + NAME + '.s.ref').read().split('; Override launch')[0]

def vr(a, n): return f'v[{a}:{a+n-1}]' if n > 1 else f'v{a}'

class G:
    def __init__(self, depth=4, npre=20, fpos=6, stamps=False, spin=1 << 22, nt_w=True, nt_mod=True, wq_early=4):
        self.L = []
        self.depth, self.npre, self.fpos, self.stamps, self.spin = depth, npre, fpos, stamps, spin
        self.nt_w, self.nt_mod, self.wq_early = nt_w, nt_mod, wq_early
        self.nlab = 0
    def e(self, s): self.L.append('  ' + s)
    def lab(self, s): self.L.append(s + ':')
    def newlab(self, p):
        self.nlab += 1
        return f'L_{p}{self.nlab}'
    def srd(self, base, ptr, nbytes):
        e = self.e
        e(f's_mov_b32 s{base}, s{ptr}'); e(f's_mov_b32 s{base+1}, s{ptr+1}')
        e(f's_mov_b32 s{base+2}, {hex(nbytes)}'); e(f's_mov_b32 s{base+3}, 0x20000')
    def stamp(self, i, vS):
        if not self.stamps: return
        e = self.e
        e('s_memrealtime s[34:35]'); e('s_waitcnt lgkmcnt(0)'); e(f'v_writelane_b32 v{vS}, s34, {i}')
    def stamp_flush(self, vS, vtmp):
        if not self.stamps: return
        e = self.e
        e('s_mov_b64 exec, -1')
        e('s_lshl_b32 s24, s2, 3'); e('s_add_u32 s24, s24, s3'); e('s_lshl_b32 s24, s24, 8'); e(f's_add_u32 s24, s24, {WS_STAMP}')
        e(f'v_lshlrev_b32 v{vtmp}, 2, v1')
        e(f'buffer_store_dword v{vS}, v{vtmp}, s[12:15], s24 offen')
    def rbf(self, x, t=None):
        t = x if t is None else t
        self.e(f'v_cvt_pk_bf16_f32 v{t}, v{x}, v{x}'); self.e(f'v_and_b32 v{x}, 0xffff0000, v{t}')
    def rbf2(self, a, b, t):
        self.e(f'v_cvt_pk_bf16_f32 v{t}, v{a}, v{b}')
        self.e(f'v_lshlrev_b32 v{a}, 16, v{t}'); self.e(f'v_and_b32 v{b}, 0xffff0000, v{t}')
    def allred(self, op, x, t, lanes=64, first=1):
        e = self.e
        steps = {1: 'quad_perm:[1,0,3,2]', 2: 'quad_perm:[2,3,0,1]', 4: 'row_half_mirror', 8: 'row_mirror'}
        s = first
        while s < lanes:
            if s < 16:
                ctl = steps[s] if first == 1 else f'row_ror:{s}'
                e(f'{op}_dpp v{x}, v{x}, v{x} {ctl} row_mask:0xf bank_mask:0xf')
            else:
                e(f'v_mov_b32 v{t}, v{x}')
                e(f'v_permlane{s}_swap_b32 v{x}, v{t}')
                e(f'{op} v{x}, v{x}, v{t}')
            s *= 2
    def poll_counter(self, voff_imm_soff, target, vt, sleep=1):
        e = self.e
        l0, l1 = self.newlab('pc'), self.newlab('pcd')
        e('s_mov_b32 s31, 0')
        self.lab(l0)
        e(f'buffer_load_dword v{vt}, off, s[16:19], {voff_imm_soff} sc1')
        e('s_waitcnt vmcnt(0)')
        e(f'v_readfirstlane_b32 s24, v{vt}')
        e(f's_cmp_ge_u32 s24, {target}')
        e(f's_cbranch_scc1 {l1}')
        e('s_add_u32 s31, s31, 1')
        e(f's_cmp_ge_u32 s31, {self.spin}')
        e(f's_cbranch_scc1 {l1}')
        if sleep: e(f's_sleep {sleep}')
        e(f's_branch {l0}')
        self.lab(l1)
    def poll_data(self, loads, regs, vt, sleep=0):
        e = self.e
        l0, l1 = self.newlab('pd'), self.newlab('pdd')
        e('s_mov_b32 s31, 0')
        self.lab(l0)
        for s in loads: e(s)
        e('s_waitcnt vmcnt(0)')
        rs = list(regs)
        if len(rs) == 1: cur = rs[0]
        elif len(rs) == 2:
            e(f'v_max_u32 v{vt}, v{rs[0]}, v{rs[1]}'); cur = vt
        else:
            e(f'v_max3_u32 v{vt}, v{rs[0]}, v{rs[1]}, v{rs[2]}'); rs = rs[3:]; cur = vt
            while len(rs) >= 2:
                e(f'v_max3_u32 v{vt}, v{vt}, v{rs[0]}, v{rs[1]}'); rs = rs[2:]
            if rs: e(f'v_max_u32 v{vt}, v{vt}, v{rs[0]}')
        e(f'v_cmp_eq_u32 vcc, -1, v{cur}')
        e(f's_cbranch_vccz {l1}')
        e('s_add_u32 s31, s31, 1')
        e(f's_cmp_ge_u32 s31, {self.spin}')
        e(f's_cbranch_scc1 {l1}')
        if sleep: e(f's_sleep {sleep}')
        e(f's_branch {l0}')
        self.lab(l1)
    def perm_op(self, dst, raw, width, m, npair=4):
        sel = 's28' if (m & 1) else 's27'
        for t in range(npair):
            self.e(f'v_perm_b32 v{dst+t}, v{raw[2*t+1] + (m >> 1)}, v{raw[2*t] + (m >> 1)}, {sel}')

    def attention(self):
        e = self.e; vm = VM(e); D = self.depth; NP = self.npre
        KB = 8; VP = KB + 148
        assert VP + 4 * NP <= 236
        Q = 236; X = 240; Y = 248; VF = 253; VS = 255; TMP = 254
        K = lambda i: KB + 4 * i
        V = lambda i: (VP + 4 * i) if i < NP else K(i - NP)
        free0 = K(37 - NP)
        ACC = free0; PT = ACC + 32; PX = PT + 12; PR = PX + 4; PY = PR + 4; MISC = PY + 4
        assert MISC + 12 <= VP
        e('s_sub_u32 s24, s2, 32')
        e('s_mul_i32 s20, s24, 9363'); e('s_lshr_b32 s20, s20, 16')
        e('s_mul_i32 s21, s20, 7'); e('s_sub_u32 s21, s24, s21')
        e('s_mul_i32 s22, s3, 7'); e('s_add_u32 s22, s22, s21')
        e('s_lshl_b32 s23, s22, 10')
        e('s_lshr_b32 s25, s20, 3'); e('s_and_b32 s26, s20, 7')
        e('s_lshl_b32 s24, s20, 21')
        e('v_lshlrev_b32 v3, 4, v1')
        e('v_and_b32 v2, 12, v1'); e('v_lshlrev_b32 v2, 6, v2')
        e('v_lshrrev_b32 v4, 4, v1'); e('v_lshlrev_b32 v4, 6, v4'); e('v_add_u32 v2, v2, v4')
        e('v_and_b32 v4, 3, v1'); e('v_lshlrev_b32 v4, 4, v4'); e('v_add_u32 v2, v2, v4')
        e('s_waitcnt lgkmcnt(0)')
        for base, p in ((4, 38), (8, 40)):
            e(f's_add_u32 s{base}, s{p}, s24'); e(f's_addc_u32 s{base+1}, s{p+1}, 0')
            e(f's_mov_b32 s{base+2}, 0x200000'); e(f's_mov_b32 s{base+3}, 0x20000')
        def ld(kind, i):
            srd = 's[4:7]' if kind == 'K' else 's[8:11]'
            r = K(i) if kind == 'K' else V(i)
            if i < 36:
                e(f's_add_u32 s24, s23, {56 * 1024 * i}')
                e(f'buffer_load_dwordx4 {vr(r,4)}, {"v2" if kind == "K" else "v3"}, {srd}, s24 offen nt')
            else:
                e(f'buffer_load_dwordx4 {vr(r,4)}, {"v4" if kind == "K" else "v5"}, {srd}, 0 offen nt')
            vm.issue(f'{kind}{i}')
        for i in range(D + 1): ld('K', i)
        self.srd(12, 62, WS_BYTES); self.srd(16, 60, 256)
        if self.stamps: e(f'v_mov_b32 v{VS}, 0')
        self.stamp(0, VS)
        e(f's_add_u32 s24, s23, {2016 * 1024}')
        e('v_add_u32 v4, s24, v2'); e('v_add_u32 v5, s24, v3')
        e('s_mov_b32 s27, 0x05040100'); e('s_mov_b32 s28, 0x07060302')
        e(f's_mov_b32 s29, {hex(SCALE)}'); e(f's_mov_b32 s30, {hex(LOG2E)}')
        e('v_and_b32 v6, 3, v1'); e('v_lshlrev_b32 v6, 8, v6'); e('v_lshrrev_b32 v7, 2, v1'); e('v_lshlrev_b32 v7, 4, v7')
        e('v_add_u32 v6, v6, v7')
        for i in range(5): e(f'v_mov_b32 v{Y+i}, {hex(NEG_INF)}')
        e('s_lshl_b32 s64, s26, 2'); e(f's_add_u32 s64, s64, {DBG_Q}')
        e('s_lshl_b32 s65, s25, 13'); e('s_lshl_b32 s66, s26, 10'); e('s_add_u32 s65, s65, s66'); e(f's_add_u32 s65, s65, {WS_Q}')
        for i in range(D + 1, 37):
            vm.throttle(D); ld('K', i)
        for i in range(NP):
            vm.throttle(D); ld('V', i)
            if i == self.fpos:
                e(f'buffer_load_dword v{VF}, off, s[16:19], s64 sc1'); vm.issue('F')
            if i == self.fpos + D + 1:
                vm.wait('F')
                ok = self.newlab('qok')
                e(f'v_readfirstlane_b32 s24, v{VF}')
                e('s_cmp_ge_u32 s24, 4')
                e(f's_cbranch_scc1 {ok}')
                self.poll_counter('s64', 4, VF, sleep=2)
                self.lab(ok)
                e(f'buffer_load_dwordx4 {vr(Q,4)}, v6, s[12:15], s65 offen sc1'); vm.issue('Q')
        self.stamp(1, VS)
        vm.wait('Q')
        nxt = [NP]
        def more(n=1):
            for _ in range(n):
                if nxt[0] < 37: ld('V', nxt[0]); nxt[0] += 1
        groups = [list(range(i, min(i + 3, 37))) for i in range(0, 37, 3)]
        def mf(i): e(f'{MFMA} {vr(K(i),4)}, {vr(K(i),4)}, {vr(Q,4)}, 0')
        def dpp(i, s):
            n = (i >> 3) if i < 32 else 0
            dst = X + (i & 7) if i < 32 else Y + (i - 32)
            c = (n + 1 + s) & 3
            src1 = K(i) + n if s == 0 else dst
            e(f'v_add_f32_dpp v{dst}, v{K(i)+c}, v{src1} row_ror:{(4 * (n - c)) % 16} row_mask:0xf bank_mask:{hex(1 << n)}')
        for g in groups[:2]:
            for i in g: mf(i)
        for gi, g in enumerate(groups):
            ahead = groups[gi + 2] if gi + 2 < len(groups) else []
            for s in range(3):
                if s < len(ahead): mf(ahead[s])
                for i in g: dpp(i, s)
            if gi in (2, 6, 10): more()
        skip = self.newlab('v36')
        e('s_cmp_lt_u32 s22, 32'); e(f's_cbranch_scc1 {skip}')
        e(f'v_mov_b32 v{Y+4}, {hex(NEG_INF)}')
        self.lab(skip)
        S = [X + i for i in range(8)] + [Y + i for i in range(5)]
        T0 = MISC
        for rep in range(2):
            for a in range(0, 12, 2): self.rbf2(S[a], S[a + 1], T0 + (a >> 1) % 4)
            self.rbf(S[12], T0)
            if rep == 0:
                for r in S: e(f'v_mul_f32 v{r}, s29, v{r}')
        more()
        M = MISC + 4; Ls = MISC + 5; NM = MISC + 6
        e(f'v_max3_f32 v{M}, v{S[0]}, v{S[1]}, v{S[2]}')
        for a in range(3, 13, 2): e(f'v_max3_f32 v{M}, v{M}, v{S[a]}, v{S[a+1]}')
        self.allred('v_max_f32', M, T0, 64, first=4)
        e(f'v_mul_f32 v{NM}, s30, v{M}')
        for r in S: e(f'v_fma_f32 v{r}, v{r}, s30, -v{NM}')
        for r in S: e(f'v_exp_f32 v{r}, v{r}')
        more()
        e(f'v_add_f32 v{Ls}, v{S[0]}, v{S[1]}')
        for r in S[2:]: e(f'v_add_f32 v{Ls}, v{Ls}, v{r}')
        for t in range(4): e(f'v_cvt_pk_bf16_f32 v{PX+t}, v{X+2*t}, v{X+2*t+1}')
        e(f'v_cvt_pk_bf16_f32 v{PY}, v{Y}, v{Y+1}'); e(f'v_cvt_pk_bf16_f32 v{PY+1}, v{Y+2}, v{Y+3}')
        e(f'v_cvt_pk_bf16_f32 v{PY+2}, v{Y+4}, 0'); e(f'v_mov_b32 v{PY+3}, 0')
        self.allred('v_add_f32', Ls, T0, 64, first=4)
        LDS_ML = 8 * 2112
        e('s_lshl_b32 s24, s3, 5'); e(f's_add_u32 s24, s24, {LDS_ML}')
        e(f'v_lshl_add_u32 v{T0}, v1, 3, s24')
        e('s_mov_b64 exec, 15')
        e(f'ds_write_b64 v{T0}, {vr(M,2)}')
        e('s_mov_b64 exec, -1')
        self.stamp(2, VS)
        def pv(n, hooks=()):
            if n == 0: P = PX
            elif n < 4:
                P = PR
                for t in range(4): e(f'v_mov_b32_dpp v{PR+t}, v{PX+t} row_ror:{16 - 4*n} row_mask:0xf bank_mask:0xf')
            else: P = PY
            if n < 4: raw, npair = [V(8 * n + x) for x in range(8)], 4
            else: raw, npair = [V(32), V(33), V(34), V(35), V(36), V(36)], 3
            self.perm_op(PT, raw, 4, 0, npair)
            for m in range(8):
                if m + 1 < 8: self.perm_op(PT + 4 * ((m + 1) % 3), raw, 4, m + 1, npair)
                c = '0' if n == 0 else vr(ACC + 4 * m, 4)
                e(f'{MFMA} {vr(ACC+4*m,4)}, {vr(PT+4*(m%3),4)}, {vr(P,4)}, {c}')
                if m in hooks: more()
        vm.wait('V7'); pv(0, (3,)); vm.wait('V15'); pv(1, (3,))
        vm.wait('V23'); more(2)
        pv(2, (3,))
        while nxt[0] < 37:
            vm.throttle(D); more()
        vm.wait('V31')
        pv(3)
        e('s_waitcnt lgkmcnt(0)'); e('s_barrier')
        A0 = MISC; MW = MISC + 8; SC = MISC + 7
        e('s_lshr_b32 s66, s3, 1')
        e('s_lshl_b32 s24, s66, 3'); e(f's_add_u32 s24, s24, {LDS_ML}')
        e(f'v_and_b32 v{A0}, 7, v1'); e(f'v_lshl_add_u32 v{A0}, v{A0}, 5, s24')
        e(f'ds_read_b64 {vr(MW,2)}, v{A0}')
        e('s_waitcnt lgkmcnt(0)')
        e(f'v_mov_b32 v{M}, v{MW}')
        self.allred('v_max_f32', M, T0, 8)
        e(f'v_sub_f32 v{SC}, v{MW}, v{M}'); e(f'v_mul_f32 v{SC}, s30, v{SC}'); e(f'v_exp_f32 v{SC}, v{SC}')
        e(f'v_mul_f32 v{Ls}, v{SC}, v{MW+1}')
        self.allred('v_add_f32', Ls, T0, 8)
        for w in range(8): e(f'v_readlane_b32 s{68+w}, v{SC}, {w}')
        e('s_lshl_b32 s67, s26, 2'); e('s_add_u32 s67, s67, s66'); e(f's_mul_i32 s67, s67, {BLK_SZ}'); e(f's_add_u32 s67, s67, {WS_BLK}')
        e('s_lshl_b32 s24, s25, 6'); e('s_lshl_b32 s76, s21, 3'); e('s_add_u32 s24, s24, s76'); e('s_add_u32 s24, s24, s67')
        e(f's_add_u32 s24, s24, {BLK_ML}')
        e('s_mov_b64 exec, 1')
        e(f'buffer_store_dwordx2 {vr(M,2)}, off, s[12:15], s24 sc1'); vm.issue('ML')
        e('s_mov_b64 exec, -1')
        AW = MISC; AR = MISC + 1; AO = MISC + 2
        e('s_mul_i32 s24, s3, 2112')
        e(f'v_and_b32 v{AW}, 3, v1'); e(f'v_mul_u32_u24 v{AW}, 528, v{AW}'); e(f'v_and_b32 v{AR}, 48, v1')
        e(f'v_add3_u32 v{AW}, v{AW}, v{AR}, s24')
        e('s_mul_i32 s24, s66, 528'); e('s_and_b32 s76, s3, 1'); e('s_lshl_b32 s76, s76, 8'); e('s_add_u32 s24, s24, s76')
        e(f'v_lshl_add_u32 v{AR}, v1, 2, s24')
        e(f'v_lshlrev_b32 v{AO}, 2, v1')
        e('s_mul_i32 s24, s25, 7'); e('s_add_u32 s24, s24, s21'); e('s_lshl_b32 s24, s24, 9'); e('s_add_u32 s77, s24, s67'); e('s_add_u32 s77, s77, s76')
        self.stamp(3, VS)
        vm.wait('V36')
        self.stamp(4, VS)
        pv(4)
        e('s_mov_b32 s32, 0x000f000f'); e('s_mov_b32 s33, 0x000f000f')
        e('s_mov_b64 exec, s[32:33]')
        for m in range(8): e(f'ds_write_b128 v{AW}, {vr(ACC+4*m,4)} offset:{64*m}')
        e('s_mov_b64 exec, -1')
        e('s_waitcnt lgkmcnt(0)'); e('s_barrier')
        R0 = PT
        for w in range(8): e(f'ds_read_b32 v{R0+w}, v{AR} offset:{2112*w}')
        e('s_waitcnt lgkmcnt(0)')
        e(f'v_mul_f32 v{R0}, s68, v{R0}')
        for w in range(1, 8): e(f'v_fmac_f32 v{R0}, s{68+w}, v{R0+w}')
        e(f'buffer_store_dword v{R0}, v{AO}, s[12:15], s77 offen sc1')
        self.stamp(5, VS)
        self.stamp_flush(VS, TMP)
        e('s_endpgm')

    def stats(self, xs, t0):
        e = self.e
        s, t, mean, ss = t0, t0 + 1, t0 + 2, t0 + 3
        e(f'v_add_f32 v{s}, v{xs[0]}, v{xs[1]}')
        for r in xs[2:]: e(f'v_add_f32 v{s}, v{s}, v{r}')
        self.allred('v_add_f32', s, t)
        e(f'v_mul_f32 v{mean}, 0x3b000000, v{s}')
        e(f'v_sub_f32 v{t}, v{xs[0]}, v{mean}'); e(f'v_mul_f32 v{ss}, v{t}, v{t}')
        for r in xs[1:]:
            e(f'v_sub_f32 v{t}, v{r}, v{mean}'); e(f'v_fmac_f32 v{ss}, v{t}, v{t}')
        self.allred('v_add_f32', ss, t)
        e(f'v_mul_f32 v{ss}, 0x3b000000, v{ss}')
        self.rbf2(mean, ss, t)
        e(f'v_add_f32 v{ss}, 0x3727c5ac, v{ss}')
        self.rbf(ss, t)
        e(f'v_sqrt_f32 v{ss}, v{ss}')
        self.rbf(ss, t)
        e(f'v_rcp_f32 v{ss}, v{ss}')
        return mean, ss

    def tile_mfma_raw(self, raw_base, aop, acc, pt, width=4):
        e = self.e
        nm = 2 * width
        seq = [(kap, m) for kap in range(2) for m in range(nm)]
        raw = lambda kap: [raw_base + 8 * width * kap + width * x for x in range(8)]
        self.perm_op(pt, raw(0), width, 0)
        for i, (kap, m) in enumerate(seq):
            if i + 1 < len(seq):
                k2, m2 = seq[i + 1]
                self.perm_op(pt + 4 * ((i + 1) % 3), raw(k2), width, m2)
            c = '0' if kap == 0 else vr(acc + 4 * m, 4)
            e(f'{MFMA} {vr(acc+4*m,4)}, {vr(aop[kap],4)}, {vr(pt+4*(i%3),4)}, {c}')

    def red_write(self, acc, vaddr, nm=8, off=0):
        e = self.e
        e('s_mov_b64 exec, 0xffff')
        for m in range(nm): e(f'ds_write_b128 v{vaddr}, {vr(acc+4*m,4)} offset:{off + 256*m}')
        e('s_mov_b64 exec, -1')

    def sum_partials(self, base_s, n, R, voff, vt):
        e = self.e
        loads = [f'buffer_load_dwordx4 {vr(R+4*i,4)}, v{voff}, s[12:15], {base_s} offen offset:{1024*i} sc1' if i < 4 else
                 f'buffer_load_dwordx4 {vr(R+4*i,4)}, v{voff+1}, s[12:15], {base_s} offen offset:{1024*(i-4)} sc1' for i in range(n)]
        self.poll_data(loads, range(R, R + 4 * n), vt)
        for i in range(1, n):
            for b in range(4): e(f'v_add_f32 v{R+b}, v{R+b}, v{R+4*i+b}')
        e(f'v_permlane32_swap_b32 v{R}, v{R+2}'); e(f'v_permlane32_swap_b32 v{R+1}, v{R+3}')
        e(f'v_add_f32 v{R}, v{R}, v{R+2}'); e(f'v_add_f32 v{R+1}, v{R+1}, v{R+3}')
        e(f'v_permlane16_swap_b32 v{R}, v{R+1}')
        e(f'v_add_f32 v{R}, v{R}, v{R+1}')

    def dense(self):
        e = self.e; vm = VM(e)
        ntw = ' nt' if self.nt_w else ''
        ntm = ' nt' if self.nt_mod else ''
        SCS, OBS, ACS = 1056, 288, 160
        L_SC = 0; L_HB = 4352; L_RED = 8704; L_SA = L_RED + 16384; L_STAT = L_SA + 8192; L_OB = L_STAT + 64; L_ACT = L_OB + 1152
        assert L_ACT + 640 <= LDS_BYTES
        VS = 31; ACC = 32; PT = 16
        WO, GU, DN = 64, 192, 128
        MODRAW, T, WQRAW = 64, 96, 128
        J, Gg = 2, 3
        XV, GA, GB, X2V = 12, 13, 14, 15
        e('s_mov_b32 s20, s2')
        e(f'v_and_b32 v{J}, 15, v1'); e(f'v_lshrrev_b32 v{Gg}, 4, v1')
        e(f'v_mul_u32_u24 v6, {8*6144}, v{Gg}'); e(f'v_lshl_add_u32 v6, v{J}, 3, v6')
        e(f'v_lshlrev_b32 v28, 16, v{Gg}'); e(f'v_lshl_add_u32 v28, v{J}, 4, v28')
        e('s_cmp_eq_u32 s3, 0'); e('s_cselect_b32 s24, 0x40000000, 0'); e('v_add_u32 v29, s24, v28')
        e('v_lshlrev_b32 v30, 3, v0')
        e('s_and_b32 s25, s3, 3')
        e('s_lshl_b32 s24, s25, 10'); e('v_lshl_add_u32 v4, v1, 4, s24')
        e(f'v_and_b32 v5, 3, v{J}'); e('v_lshlrev_b32 v5, 2, v5'); e(f'v_lshrrev_b32 v7, 2, v{J}'); e('v_add_u32 v5, v5, v7')
        e(f'v_lshlrev_b32 v7, 10, v{Gg}'); e(f'v_lshl_add_u32 v11, v{J}, 3, v7'); e('v_lshl_add_u32 v7, v5, 1, v7')
        e('s_lshl_b32 s26, s20, 5')
        e('s_lshl_b32 s29, s3, 7')
        e(f's_mul_i32 s22, s3, {64*6144}')
        e('s_waitcnt lgkmcnt(0)')
        self.srd(4, 56, 512 * 6144)
        def mod_loads(raw, sblk):
            for kap in range(2):
                for x in range(8):
                    e(f's_add_u32 s24, {sblk}, {(32*kap + x)*6144}')
                    e(f'buffer_load_dwordx2 {vr(raw+16*kap+2*x,2)}, v6, s[4:7], s24 offen{ntm}'); vm.issue('wmod')
        self.srd(68, 54, 4096); self.srd(64, 36, 4096)
        CV = T; XR = T + 4; XQ = T + 2
        e(f'buffer_load_dwordx2 {vr(CV,2)}, v30, s[68:71], 0 offen'); vm.issue('c')
        e(f'buffer_load_dwordx4 {vr(XR,4)}, v4, s[64:67], 0 offen'); vm.issue('x')
        e(f'buffer_load_dwordx2 {vr(XQ,2)}, v11, s[64:67], s29 offen'); vm.issue('xq')
        e(f'buffer_load_ushort v{XV}, v7, s[64:67], s26 offen'); vm.issue('xv')
        e('s_lshl_b32 s92, s20, 7'); e('s_add_u32 s92, s92, s22')
        mod_loads(MODRAW, 's92')
        self.srd(8, 42, 512 * 8192)
        e(f's_lshl_b32 s23, s3, 19'); e('s_lshl_b32 s24, s20, 8'); e('s_add_u32 s23, s23, s24')
        def wq_loads(voff, lo, hi):
            for i in range(lo, hi):
                kap, x = i >> 3, i & 7
                e(f's_add_u32 s24, s23, {(32*kap + x)*8192}')
                e(f'buffer_load_dwordx4 {vr(WQRAW+32*kap+4*x,4)}, v{voff}, s[8:11], s24 offen{ntw}'); vm.issue('wq')
        wq_loads(29, 0, self.wq_early)
        self.srd(12, 62, WS_BYTES); self.srd(16, 60, 256); self.srd(88, 58, 4096)
        if self.stamps: e(f'v_mov_b32 v{VS}, 0')
        self.stamp(0, VS)
        e(f's_mul_i32 s21, s20, {BLK_SZ}'); e(f's_add_u32 s21, s21, {WS_BLK}')
        e('s_mov_b32 s27, 0x05040100'); e('s_mov_b32 s28, 0x07060302'); e(f's_mov_b32 s30, {hex(LOG2E)}')
        e('s_mov_b32 s93, 0x32a5705f')
        vm.wait('c')
        c = [T + 8 + i for i in range(4)]; t = [T + 12 + i for i in range(4)]; u = [T + 16 + i for i in range(4)]; w_ = [T + 20 + i for i in range(4)]
        e(f'v_lshlrev_b32 v{c[0]}, 16, v{CV}'); e(f'v_and_b32 v{c[1]}, 0xffff0000, v{CV}')
        e(f'v_lshlrev_b32 v{c[2]}, 16, v{CV+1}'); e(f'v_and_b32 v{c[3]}, 0xffff0000, v{CV+1}')
        for i in range(4): e(f'v_mul_f32 v{t[i]}, s30, v{c[i]}')
        for i in range(4): e(f'v_fma_f32 v{u[i]}, v{c[i]}, s30, -v{t[i]}')
        for i in range(4): e(f'v_fma_f32 v{u[i]}, v{c[i]}, s93, v{u[i]}')
        for i in range(4): e(f'v_rndne_f32 v{w_[i]}, v{t[i]}')
        for i in range(4): e(f'v_sub_f32 v{t[i]}, v{t[i]}, v{w_[i]}')
        for i in range(4): e(f'v_add_f32 v{t[i]}, v{t[i]}, v{u[i]}')
        for i in range(4): e(f'v_exp_f32 v{t[i]}, -v{t[i]}')
        for i in range(4): e(f'v_cvt_i32_f32 v{w_[i]}, -v{w_[i]}')
        for i in range(4): e(f'v_ldexp_f32 v{t[i]}, v{t[i]}, v{w_[i]}')
        for i in range(4): e(f'v_add_f32 v{t[i]}, 1.0, v{t[i]}')
        for i in range(4): e(f'v_rcp_f32 v{u[i]}, v{t[i]}')
        for i in range(4): e(f'v_fma_f32 v{w_[i]}, -v{t[i]}, v{u[i]}, 1.0')
        for i in range(4): e(f'v_fma_f32 v{u[i]}, v{w_[i]}, v{u[i]}, v{u[i]}')
        for i in range(4): e(f'v_mul_f32 v{w_[i]}, v{c[i]}, v{u[i]}')
        for i in range(4): e(f'v_fma_f32 v{T+24+i}, -v{t[i]}, v{w_[i]}, v{c[i]}')
        for i in range(4): e(f'v_fma_f32 v{w_[i]}, v{T+24+i}, v{u[i]}, v{w_[i]}')
        for i in range(4): e(f'v_div_fixup_f32 v{c[i]}, v{w_[i]}, v{t[i]}, v{c[i]}')
        e(f'v_cvt_pk_bf16_f32 v{CV}, v{c[0]}, v{c[1]}'); e(f'v_cvt_pk_bf16_f32 v{CV+1}, v{c[2]}, v{c[3]}')
        e(f'v_lshrrev_b32 v{T+28}, 7, v0'); e(f'v_lshl_add_u32 v{T+28}, v{T+28}, 5, v30')
        e(f'ds_write_b64 v{T+28}, {vr(CV,2)} offset:{L_SC}')
        vm.wait('xv')
        xs = list(range(T + 8, T + 16))
        for i in range(4):
            e(f'v_lshlrev_b32 v{xs[2*i]}, 16, v{XR+i}'); e(f'v_and_b32 v{xs[2*i+1]}, 0xffff0000, v{XR+i}')
        mean, rden = self.stats(xs, T + 16)
        e(f'v_lshlrev_b32 v{XV}, 16, v{XV}')
        e('s_lshl_b32 s24, s25, 3'); e(f'v_mov_b32 v{T+28}, s24')
        e('s_mov_b64 exec, 1')
        e(f'ds_write_b64 v{T+28}, {vr(mean,2)} offset:{L_STAT}')
        e('s_mov_b64 exec, -1')
        e(f'v_and_b32 v8, 3, v1'); e(f'v_mul_u32_u24 v8, {SCS}, v8'); e(f'v_lshl_add_u32 v8, v{Gg}, 4, v8')
        e('v_add_u32 v8, s29, v8')
        e('s_lshl_b32 s24, s3, 11'); e(f's_add_u32 s24, s24, {L_RED}'); e(f'v_lshl_add_u32 v9, v{J}, 4, s24')
        e('v_lshlrev_b32 v10, 2, v0')
        e(f'v_lshlrev_b32 v{T+28}, 3, v{Gg}')
        e('s_waitcnt lgkmcnt(0)'); e('s_barrier')
        AOP = 48
        e(f'ds_read_b128 {vr(AOP,4)}, v8 offset:{L_SC}'); e(f'ds_read_b128 {vr(AOP+4,4)}, v8 offset:{L_SC+64}')
        e(f'ds_read_b64 {vr(T+4,2)}, v{T+28} offset:{L_STAT}')
        LN = T + 8
        e(f'v_lshlrev_b32 v{LN}, 16, v{XQ}'); e(f'v_and_b32 v{LN+1}, 0xffff0000, v{XQ}')
        e(f'v_lshlrev_b32 v{LN+2}, 16, v{XQ+1}'); e(f'v_and_b32 v{LN+3}, 0xffff0000, v{XQ+1}')
        e('s_waitcnt lgkmcnt(0)')
        for i in range(4): e(f'v_sub_f32 v{LN+i}, v{LN+i}, v{T+4}')
        self.rbf2(LN, LN + 1, T); self.rbf2(LN + 2, LN + 3, T + 1)
        for i in range(4): e(f'v_mul_f32 v{LN+i}, v{LN+i}, v{T+5}')
        self.rbf2(LN, LN + 1, T); self.rbf2(LN + 2, LN + 3, T + 1)
        e(f'v_lshlrev_b32 v4, 4, v{J}'); e(f'v_lshl_add_u32 v4, v{Gg}, 2, v4'); e(f'v_add_u32 v4, {L_RED}, v4')
        vm.wait('wmod')
        self.stamp(1, VS)
        self.tile_mfma_raw(MODRAW, [AOP, AOP + 4], ACC, PT, 2)
        self.red_write(ACC, 9, 4)
        e('s_waitcnt lgkmcnt(0)'); e('s_barrier')
        def mod_publish(R, half, sblk):
            for w in range(8):
                e(f'ds_read2st64_b32 {vr(R+4*w,2)}, v4 offset0:{8*w+4*half} offset1:{8*w+4*half+1}')
                e(f'ds_read2st64_b32 {vr(R+4*w+2,2)}, v4 offset0:{8*w+4*half+2} offset1:{8*w+4*half+3}')
            e(f's_lshr_b32 s24, {sblk}, 3'); e('s_lshl_b32 s24, s24, 12'); e(f's_and_b32 s94, {sblk}, 7'); e('s_lshl_b32 s94, s94, 7')
            e('s_add_u32 s24, s24, s94'); e(f's_add_u32 s24, s24, {WS_MOD}')
            e('s_waitcnt lgkmcnt(0)')
            for a, b in ((0, 1), (2, 3), (4, 5), (6, 7), (0, 2), (4, 6), (0, 4)):
                for m in range(4): e(f'v_add_f32 v{R+4*a+m}, v{R+4*a+m}, v{R+4*b+m}')
            e(f'v_cvt_pk_bf16_f32 v{R}, v{R}, v{R+1}'); e(f'v_cvt_pk_bf16_f32 v{R+1}, v{R+2}, v{R+3}')
            e(f'buffer_store_dwordx2 {vr(R,2)}, v11, s[12:15], s24 offen sc1')
        def cleaning():
            for i in range(4): e(f'v_mov_b32 v{T+12+i}, -1')
            e(f'v_lshlrev_b32 v{T+16}, 4, v0')
            for i in range(8):
                e(f's_add_u32 s24, s21, {4096*i}')
                e(f'buffer_store_dwordx4 {vr(T+12,4)}, v{T+16}, s[12:15], s24 offen sc1')
            e(f'v_lshlrev_b32 v{T+17}, 2, v1')
            e('s_lshl_b32 s24, s20, 8'); e(f's_add_u32 s24, s24, {WS_X2}')
            e(f'buffer_store_dword v{T+12}, v{T+17}, s[12:15], s24 offen sc1')
        l_w1, l_join = self.newlab('w1'), self.newlab('join')
        e('s_cmp_lg_u32 s3, 0'); e(f's_cbranch_scc1 {l_w1}')
        mod_publish(MODRAW, 0, 's20')
        e('s_cmp_lt_u32 s20, 16'); e(f's_cselect_b32 s94, {DBG_H}, {DBG_X}')
        e(f'v_mov_b32 v{T}, 1')
        e('s_waitcnt vmcnt(0)')
        e('s_mov_b64 exec, 1')
        e(f'buffer_atomic_add v{T}, off, s[16:19], s94 sc1')
        e('s_mov_b64 exec, -1')
        self.stamp(2, VS)
        self.poll_counter(f'0 offset:{DBG_H}', 16, T)
        self.stamp(3, VS)
        e(f'v_lshlrev_b32 v{T+16}, 4, v1'); e(f'v_add_u32 v{T+17}, 4096, v{T+16}')
        for i in range(8):
            e(f'buffer_load_dwordx4 {vr(MODRAW+4*i,4)}, v{T+16+(i>>2)}, s[12:15], {WS_MOD} offen offset:{1024*(i&3)} sc1')
        wq_loads(28, 0, 16)
        e('s_waitcnt vmcnt(16)')
        for i in range(8): e(f'ds_write_b128 v{T+16}, {vr(MODRAW+4*i,4)} offset:{L_SA + 1024*i}')
        cleaning()
        e(f's_branch {l_join}')
        self.lab(l_w1)
        wq_loads(28, self.wq_early, 16)
        e('s_cmp_ge_u32 s3, 4'); e(f's_cbranch_scc1 {l_join}')
        cleaning()
        self.lab(l_join)
        vm.q = []
        e(f'v_add_u32 v{T+18}, s29, v11')
        e(f'v_lshl_add_u32 v{T+19}, v{Gg}, 5, v{T+18}')
        e('s_waitcnt lgkmcnt(0)'); e('s_barrier')
        SA, CA = T + 20, T + 24
        e(f'ds_read_b64 {vr(T,2)}, v{T+18} offset:{L_SA}'); e(f'ds_read_b64 {vr(T+2,2)}, v{T+18} offset:{L_SA + 4096}')
        e('s_waitcnt lgkmcnt(0)')
        for dst, src in ((SA, T), (CA, T + 2)):
            e(f'v_lshlrev_b32 v{dst}, 16, v{src}'); e(f'v_and_b32 v{dst+1}, 0xffff0000, v{src}')
            e(f'v_lshlrev_b32 v{dst+2}, 16, v{src+1}'); e(f'v_and_b32 v{dst+3}, 0xffff0000, v{src+1}')
        for i in range(4): e(f'v_add_f32 v{CA+i}, 1.0, v{CA+i}')
        self.rbf2(CA, CA + 1, T); self.rbf2(CA + 2, CA + 3, T + 1)
        for i in range(4): e(f'v_mul_f32 v{LN+i}, v{LN+i}, v{CA+i}')
        self.rbf2(LN, LN + 1, T); self.rbf2(LN + 2, LN + 3, T + 1)
        for i in range(4): e(f'v_add_f32 v{LN+i}, v{LN+i}, v{SA+i}')
        e(f'v_cvt_pk_bf16_f32 v{T}, v{LN}, v{LN+1}'); e(f'v_cvt_pk_bf16_f32 v{T+1}, v{LN+2}, v{LN+3}')
        e(f'ds_write_b64 v{T+19}, {vr(T,2)} offset:{L_HB}')
        e('s_waitcnt lgkmcnt(0)')
        AQ = T + 20
        e(f'ds_read_b128 {vr(AQ,4)}, v8 offset:{L_HB}'); e(f'ds_read_b128 {vr(AQ+4,4)}, v8 offset:{L_HB+64}')
        e('s_waitcnt vmcnt(0) lgkmcnt(0)')
        self.stamp(15, VS)
        self.tile_mfma_raw(WQRAW, [AQ, AQ + 4], ACC, PT)
        self.red_write(ACC, 9)
        e(f'v_and_b32 v{T}, 3, v1'); e(f'v_lshlrev_b32 v{T}, 9, v{T}'); e(f'v_lshrrev_b32 v{T+1}, 2, v1'); e(f'v_lshl_add_u32 v{T}, v{T+1}, 4, v{T}')
        e('s_lshl_b32 s24, s25, 2'); e(f's_add_u32 s24, s24, {L_RED}'); e(f'v_add_u32 v{T}, s24, v{T}')
        e(f'v_lshlrev_b32 v{T+1}, 2, v1')
        self.srd(72, 44, 4096 * 1024); self.srd(76, 48, 512 * 3584); self.srd(80, 50, 512 * 3584); self.srd(84, 52, 1792 * 1024)
        RAW_WO, RAW_GU, RAW_DN = 192, 128, 32
        e(f'v_and_b32 v28, 1, v{Gg}'); e('v_lshlrev_b32 v28, 16, v28'); e(f'v_lshrrev_b32 v29, 1, v{Gg}'); e('v_lshl_add_u32 v28, v29, 10, v28')
        e(f'v_lshl_add_u32 v28, v{J}, 3, v28')
        e('s_lshl_b32 s95, s20, 17'); e('s_add_u32 s95, s95, s29')
        def wo_loads():
            for kap in range(4):
                for x in range(8):
                    e(f's_add_u32 s24, s95, {(8*x + 2*kap)*1024}')
                    e(f'buffer_load_dwordx2 {vr(RAW_WO+16*kap+2*x,2)}, v28, s[72:75], s24 offen{ntw}')
        e('s_waitcnt lgkmcnt(0)'); e('s_barrier')
        l_noq = self.newlab('noq'); l_q2 = self.newlab('q2')
        e('s_cmp_ge_u32 s3, 4'); e(f's_cbranch_scc1 {l_noq}')
        for w in range(8): e(f'ds_read2st64_b32 {vr(ACC+2*w,2)}, v{T} offset0:{8*w} offset1:{8*w+1}')
        e('s_waitcnt lgkmcnt(0)')
        for a, b in ((0, 1), (2, 3), (4, 5), (6, 7), (0, 2), (4, 6), (0, 4)):
            for h in range(2): e(f'v_add_f32 v{ACC+2*a+h}, v{ACC+2*a+h}, v{ACC+2*b+h}')
        e(f'v_cvt_pk_bf16_f32 v{ACC}, v{ACC}, v{ACC+1}')
        e('s_lshl_b32 s24, s25, 13'); e('s_lshl_b32 s94, s20, 8'); e('s_add_u32 s24, s24, s94'); e(f's_add_u32 s24, s24, {WS_Q}')
        e(f'buffer_store_dword v{ACC}, v{T+1}, s[12:15], s24 offen sc1')
        e('s_waitcnt vmcnt(0)')
        self.lab(l_noq)
        e('s_barrier')
        l_nosig = self.newlab('nosig')
        e('s_cmp_lg_u32 s3, 0'); e(f's_cbranch_scc1 {l_nosig}')
        e(f'v_mov_b32 v{T}, 1')
        e('s_and_b32 s24, s20, 0xfc'); e(f's_add_u32 s24, s24, {DBG_Q}')
        e('s_cmp_lt_u32 s20, 28'); e(f's_cselect_b32 s94, {DBG_M}, {DBG_X}')
        e('s_mov_b64 exec, 1')
        e(f'buffer_atomic_add v{T}, off, s[16:19], s24 sc1')
        e(f'buffer_atomic_add v{T}, off, s[16:19], s94 sc1')
        e('s_mov_b64 exec, -1')
        self.lab(l_nosig)
        self.stamp(4, VS)
        wo_loads()
        e('buffer_load_ushort v30, v7, s[88:91], s26 offen')
        def wo_perm():
            for kap in range(4):
                for m in range(4): self.perm_op(WO + 16 * kap + 4 * m, [RAW_WO + 16 * kap + 2 * x for x in range(8)], 2, m)
        l_noffn = self.newlab('noffn'); l_wdone = self.newlab('wdone')
        e('s_cmp_ge_u32 s20, 28'); e(f's_cbranch_scc1 {l_noffn}')
        e(f'v_lshrrev_b32 v28, 1, v{Gg}'); e('v_lshlrev_b32 v28, 3, v28'); e(f'v_and_b32 v29, 1, v{Gg}'); e('v_add_u32 v28, v28, v29')
        e(f'v_mul_u32_u24 v28, {2*3584}, v28'); e(f'v_and_b32 v29, 7, v{J}'); e('v_lshl_add_u32 v28, v29, 4, v28')
        e(f's_mul_i32 s22, s3, {64*3584}'); e('s_lshl_b32 s24, s20, 7'); e('s_add_u32 s22, s22, s24')
        e('s_waitcnt vmcnt(16)')
        for srd, mask in (('s[76:79]', 0x00ff00ff), ('s[80:83]', 0xff00ff00)):
            e(f's_mov_b32 s32, {hex(mask)}'); e(f's_mov_b32 s33, {hex(mask)}'); e('s_mov_b64 exec, s[32:33]')
            for kap in range(2):
                for x in range(8):
                    e(f's_add_u32 s24, s22, {(32*kap + 4*(x&3) + (x>>2))*3584}')
                    e(f'buffer_load_dwordx4 {vr(RAW_GU+32*kap+4*x,4)}, v28, {srd}, s24 offen{ntw}')
        e('s_mov_b64 exec, -1')
        e(f'v_lshlrev_b32 v29, 13, v{Gg}'); e(f'v_lshl_add_u32 v29, v{J}, 3, v29')
        e('s_lshl_b32 s22, s20, 16'); e('s_add_u32 s22, s22, s29')
        e('s_waitcnt vmcnt(32)')
        for kap in range(2):
            for x in range(8):
                e(f's_add_u32 s24, s22, {(32*kap + x)*1024}')
                e(f'buffer_load_dwordx2 {vr(RAW_DN+16*kap+2*x,2)}, v29, s[84:87], s24 offen{ntw}')
        wo_perm()
        e('s_waitcnt vmcnt(16)')
        for kap in range(2):
            for m in range(8): self.perm_op(GU + 32 * kap + 4 * m, [RAW_GU + 32 * kap + 4 * x for x in range(8)], 4, m)
        e('s_waitcnt vmcnt(0)')
        for kap in range(2):
            for m in range(4): self.perm_op(DN + 16 * kap + 4 * m, [RAW_DN + 16 * kap + 2 * x for x in range(8)], 2, m)
        e(f's_branch {l_wdone}')
        self.lab(l_noffn)
        e('s_sub_u32 s96, s20, 20'); e('s_lshl_b32 s96, s96, 2')
        e('s_lshl_b32 s92, s96, 7'); e('s_add_u32 s92, s92, s22')
        e('s_waitcnt vmcnt(16)')
        XRAW = [128, 160, 192, 224]
        for r in range(2):
            mod_loads(XRAW[r], 's92'); e('s_add_u32 s92, s92, 128')
        e(f'ds_read_b128 {vr(AOP,4)}, v8 offset:{L_SC}'); e(f'ds_read_b128 {vr(AOP+4,4)}, v8 offset:{L_SC+64}')
        e('s_waitcnt vmcnt(32)')
        wo_perm()
        e('s_waitcnt vmcnt(16) lgkmcnt(0)')
        for r in range(2, 4):
            mod_loads(XRAW[r], 's92'); e('s_add_u32 s92, s92, 128')
        for r in range(4):
            e(f's_waitcnt vmcnt({[32, 32, 0, 0][r]})')
            self.tile_mfma_raw(XRAW[r], [AOP, AOP + 4], ACC, PT, 2)
            self.red_write(ACC, 9, 4, 1024 * (r & 1))
            e('s_waitcnt lgkmcnt(0)'); e('s_barrier')
            lx = self.newlab('xb')
            e('s_cmp_lg_u32 s3, 0'); e(f's_cbranch_scc1 {lx}')
            mod_publish(XRAW[r], r & 1, 's96')
            e('s_add_u32 s96, s96, 1')
            if r == 3:
                e('v_mov_b32 v30, 1')
                e('s_waitcnt vmcnt(0)')
                e('s_mov_b64 exec, 1')
                e(f'buffer_atomic_add v30, off, s[16:19], 0 offset:{DBG_M} sc1')
                e('s_mov_b64 exec, -1')
            self.lab(lx)
        self.lab(l_wdone)
        self.stamp(5, VS)
        E = 160
        VL4 = E + 9
        e(f'v_lshlrev_b32 v{VL4}, 2, v1')
        self.poll_counter(f'0 offset:{DBG_M}', 32, 30)
        e('s_lshr_b32 s25, s3, 1'); e('s_and_b32 s23, s3, 1')
        e('s_lshl_b32 s24, s23, 4'); e('v_lshl_add_u32 v4, v1, 5, s24'); e('v_xor_b32 v6, 16, v4')
        OCB, SBV = E, E + 4
        e('v_lshrrev_b32 v28, 1, v1'); e('v_lshlrev_b32 v28, 5, v28'); e('v_and_b32 v29, 1, v1'); e('v_lshl_add_u32 v28, v29, 2, v28')
        e('s_lshl_b32 s24, s25, 10'); e('s_lshl_b32 s94, s23, 1'); e('s_add_u32 s24, s24, s94'); e(f's_add_u32 s24, s24, {WS_MOD + 3*4096}')
        for i in range(4): e(f'buffer_load_ushort v{SBV+i}, v28, s[12:15], s24 offen offset:{8*i} sc1')
        e('s_add_u32 s24, s24, 4096')
        for i in range(4): e(f'buffer_load_ushort v{OCB+i}, v28, s[12:15], s24 offen offset:{8*i} sc1')
        e(f's_add_u32 s24, s26, {WS_MOD + 2*4096}')
        e(f'buffer_load_ushort v{GA}, v7, s[12:15], s24 offen sc1')
        e(f's_add_u32 s24, s26, {WS_MOD + 5*4096}')
        e(f'buffer_load_ushort v{GB}, v7, s[12:15], s24 offen sc1')
        e('s_lshl_b32 s22, s25, 11'); e(f's_add_u32 s22, s22, {WS_X2}')
        e('v_and_b32 v28, 7, v1'); e('v_cmp_gt_u32 s[100:101], 7, v28'); e('v_min_u32 v28, 6, v28'); e('v_lshlrev_b32 v28, 3, v28')
        e('s_lshl_b32 s64, s25, 6'); e('s_add_u32 s64, s64, s21'); e(f's_add_u32 s64, s64, {BLK_ML}')
        e('s_mul_i32 s65, s25, 3584'); e('s_lshl_b32 s24, s23, 8'); e('s_add_u32 s65, s65, s24'); e('s_add_u32 s65, s65, s21')
        e(f's_mul_i32 s24, s25, {OBS}'); e('s_lshl_b32 s94, s23, 7'); e('s_add_u32 s24, s24, s94'); e(f's_add_u32 s24, s24, {L_OB}')
        e('v_lshl_add_u32 v29, v1, 1, s24')
        VACT_R, VYZ, VP0, VX2, VH2, VACT_W, VT = E + 8, E + 10, E + 12, E + 14, E + 15, E + 16, E + 17
        e(f'v_and_b32 v30, 3, v1'); e(f'v_mul_u32_u24 v{VACT_R}, {ACS}, v30'); e(f'v_mul_u32_u24 v30, {OBS}, v30')
        e(f'v_lshl_add_u32 v30, v{Gg}, 4, v30'); e(f'v_lshl_add_u32 v{VACT_R}, v{Gg}, 4, v{VACT_R}')
        e(f'v_lshrrev_b32 v{VYZ}, 2, v{J}'); e('s_lshl_b32 s24, s3, 2'); e(f'v_add_u32 v{VYZ}, s24, v{VYZ}'); e(f'v_lshlrev_b32 v{VYZ}, 15, v{VYZ}')
        e(f'v_and_b32 v{VT}, 3, v{J}'); e(f'v_lshl_add_u32 v{VYZ}, v{VT}, 4, v{VYZ}')
        e('s_lshl_b32 s24, s20, 8'); e(f's_add_u32 s66, s24, {WS_BLK + BLK_Y}'); e(f's_add_u32 s67, s24, {WS_BLK + BLK_Z}')
        e(f's_add_u32 s68, s21, {BLK_Y}'); e(f's_add_u32 s69, s21, {BLK_Z}')
        e(f'v_lshlrev_b32 v{VP0}, 4, v1'); e(f'v_add_u32 v{VP0+1}, 4096, v{VP0}')
        e(f'v_lshlrev_b32 v{VX2}, 11, v{Gg}'); e(f'v_lshl_add_u32 v{VX2}, v{J}, 2, v{VX2}')
        e('s_lshl_b32 s70, s20, 6'); e(f's_add_u32 s70, s70, {WS_X2}')
        e(f's_mul_i32 s24, s25, {SCS}'); e('s_lshl_b32 s94, s23, 3'); e('s_add_u32 s24, s24, s94'); e(f'v_lshl_add_u32 v{VH2}, v1, 4, s24')
        e(f'v_and_b32 v{VACT_W}, 3, v1'); e(f'v_mul_u32_u24 v{VACT_W}, {ACS}, v{VACT_W}'); e(f'v_bfe_u32 v{VT}, v1, 2, 3'); e(f'v_lshl_add_u32 v{VACT_W}, v{VT}, 4, v{VACT_W}')
        e('s_lshl_b32 s24, s3, 1'); e(f's_add_u32 s24, s24, {L_ACT}'); e(f'v_add_u32 v{VACT_W}, s24, v{VACT_W}')
        e('s_waitcnt vmcnt(0)')
        for r in [SBV, SBV + 1, SBV + 2, SBV + 3, OCB, OCB + 1, OCB + 2, OCB + 3, GA, GB]: e(f'v_lshlrev_b32 v{r}, 16, v{r}')
        for i in range(4): e(f'v_add_f32 v{OCB+i}, 1.0, v{OCB+i}')
        self.rbf2(OCB, OCB + 1, VT); self.rbf2(OCB + 2, OCB + 3, VT)
        def red_sum(R):
            for w in range(8): e(f'ds_read_b32 v{R+w}, v10 offset:{L_RED + 2048*w}')
            e('s_waitcnt lgkmcnt(0)')
            for a, b in ((0, 1), (2, 3), (4, 5), (6, 7), (0, 2), (4, 6), (0, 4)): e(f'v_add_f32 v{R+a}, v{R+a}, v{R+b}')
        self.stamp(6, VS)
        MW = 16; M = 18; SC = 19; Ls = 20; T0 = 21
        self.poll_data([f'buffer_load_dwordx2 {vr(MW,2)}, v28, s[12:15], s64 offen sc1'], [MW, MW + 1], T0, sleep=2)
        self.stamp(7, VS)
        e(f'v_mov_b32 v{M}, v{MW}')
        self.allred('v_max_f32', M, T0, 8)
        e(f'v_sub_f32 v{SC}, v{MW}, v{M}'); e(f'v_mul_f32 v{SC}, s30, v{SC}'); e(f'v_exp_f32 v{SC}, v{SC}')
        e(f'v_cndmask_b32 v{SC}, 0, v{SC}, s[100:101]')
        e(f'v_mul_f32 v{Ls}, v{SC}, v{MW+1}')
        self.allred('v_add_f32', Ls, T0, 8)
        e(f'v_rcp_f32 v{Ls}, v{Ls}'); e(f'v_mul_f32 v{SC}, v{SC}, v{Ls}')
        for s in range(7): e(f'v_readlane_b32 s{92+s}, v{SC}, {s}')
        R = 16
        self.poll_data([f'buffer_load_dword v{R+s}, v{VL4}, s[12:15], s65 offen offset:{512*s} sc1' for s in range(7)], range(R, R + 7), R + 7)
        self.stamp(8, VS)
        e(f'v_mul_f32 v{R}, s92, v{R}')
        for s in range(1, 7): e(f'v_fmac_f32 v{R}, s{92+s}, v{R+s}')
        e(f'v_cvt_pk_bf16_f32 v{R}, v{R}, v{R}')
        e(f'ds_write_b16 v29, v{R}')
        e('s_waitcnt lgkmcnt(0)'); e('s_barrier')
        AO = 48
        for kap in range(4): e(f'ds_read_b128 {vr(AO+4*kap,4)}, v30 offset:{L_OB + 64*kap}')
        for kap in range(4):
            e(f's_waitcnt lgkmcnt({3-kap})')
            for m in range(4):
                c = '0' if kap == 0 else vr(ACC + 4 * m, 4)
                e(f'{MFMA} {vr(ACC+4*m,4)}, {vr(AO+4*kap,4)}, {vr(WO+16*kap+4*m,4)}, {c}')
        e('s_mov_b64 exec, 0xffff')
        for m in range(4): e(f'buffer_store_dwordx4 {vr(ACC+4*m,4)}, v{VYZ}, s[12:15], s66 offen offset:{64*m} sc1')
        e('s_mov_b64 exec, -1')
        self.stamp(9, VS)
        l_e2b = self.newlab('e2b')
        e('s_cmp_lg_u32 s3, 0'); e(f's_cbranch_scc1 {l_e2b}')
        R = 64
        self.sum_partials('s68', 8, R, VP0, 16)
        self.stamp(10, VS)
        self.rbf(R, 16)
        e(f'v_mul_f32 v{R}, v{GA}, v{R}'); self.rbf(R, 16)
        e(f'v_add_f32 v{X2V}, v{XV}, v{R}'); self.rbf(X2V, 16)
        e(f'buffer_store_dword v{X2V}, v{VX2}, s[12:15], s70 offen sc1')
        self.lab(l_e2b)
        l_e4 = self.newlab('e4')
        e('s_cmp_ge_u32 s20, 28'); e(f's_cbranch_scc1 {l_e4}')
        XS = 32
        self.poll_data([f'buffer_load_dwordx4 {vr(XS,4)}, v4, s[12:15], s22 offen sc1',
                        f'buffer_load_dwordx4 {vr(XS+4,4)}, v6, s[12:15], s22 offen sc1'], range(XS, XS + 8), 16)
        self.stamp(11, VS)
        mean, rden = self.stats(list(range(XS, XS + 8)), 16)
        for i in range(4): e(f'v_sub_f32 v{XS+i}, v{XS+i}, v{mean}')
        self.rbf2(XS, XS + 1, 20); self.rbf2(XS + 2, XS + 3, 21)
        for i in range(4): e(f'v_mul_f32 v{XS+i}, v{XS+i}, v{rden}')
        self.rbf2(XS, XS + 1, 20); self.rbf2(XS + 2, XS + 3, 21)
        for i in range(4): e(f'v_mul_f32 v{XS+i}, v{XS+i}, v{OCB+i}')
        self.rbf2(XS, XS + 1, 20); self.rbf2(XS + 2, XS + 3, 21)
        for i in range(4): e(f'v_add_f32 v{XS+i}, v{XS+i}, v{SBV+i}')
        e(f'v_cvt_pk_bf16_f32 v{XS}, v{XS}, v{XS+1}'); e(f'v_cvt_pk_bf16_f32 v{XS+1}, v{XS+2}, v{XS+3}')
        e(f'ds_write_b64 v{VH2}, {vr(XS,2)} offset:{L_HB}')
        e('s_waitcnt lgkmcnt(0)'); e('s_barrier')
        AH = 16
        e(f'ds_read_b128 {vr(AH,4)}, v8 offset:{L_HB}'); e(f'ds_read_b128 {vr(AH+4,4)}, v8 offset:{L_HB+64}')
        for kap in range(2):
            e(f's_waitcnt lgkmcnt({1-kap})')
            for m in range(8):
                c = '0' if kap == 0 else vr(ACC + 4 * m, 4)
                e(f'{MFMA} {vr(ACC+4*m,4)}, {vr(AH+4*kap,4)}, {vr(GU+32*kap+4*m,4)}, {c}')
        self.red_write(ACC, 9)
        e('s_waitcnt lgkmcnt(0)'); e('s_barrier')
        R = 16
        red_sum(R)
        self.rbf(R, R + 1)
        e(f'v_mov_b32 v{R+1}, v{R}')
        e(f'v_permlane32_swap_b32 v{R}, v{R+1}')
        e(f'v_mul_f32 v{R+2}, v{R}, v{R}')
        e(f'v_mul_f32 v{R+2}, 0x3d372713, v{R+2}')
        e(f'v_fma_f32 v{R+2}, v{R+2}, v{R}, v{R}')
        e(f'v_mul_f32 v{R+2}, 0xc0135761, v{R+2}')
        e(f'v_exp_f32 v{R+2}, v{R+2}')
        e(f'v_add_f32 v{R+2}, 1.0, v{R+2}')
        e(f'v_rcp_f32 v{R+2}, v{R+2}')
        e(f'v_mul_f32 v{R}, v{R}, v{R+2}')
        self.rbf(R, R + 2)
        e(f'v_mul_f32 v{R}, v{R}, v{R+1}')
        e(f'v_cvt_pk_bf16_f32 v{R}, v{R}, v{R}')
        e(f'ds_write_b16 v{VACT_W}, v{R}')
        e('s_waitcnt lgkmcnt(0)'); e('s_barrier')
        e(f'ds_read_b128 {vr(AH,4)}, v{VACT_R} offset:{L_ACT}'); e(f'ds_read_b128 {vr(AH+4,4)}, v{VACT_R} offset:{L_ACT+64}')
        for kap in range(2):
            e(f's_waitcnt lgkmcnt({1-kap})')
            for m in range(4):
                c = '0' if kap == 0 else vr(ACC + 4 * m, 4)
                e(f'{MFMA} {vr(ACC+4*m,4)}, {vr(AH+4*kap,4)}, {vr(DN+16*kap+4*m,4)}, {c}')
        e('s_mov_b64 exec, 0xffff')
        for m in range(4): e(f'buffer_store_dwordx4 {vr(ACC+4*m,4)}, v{VYZ}, s[12:15], s67 offen offset:{64*m} sc1')
        e('s_mov_b64 exec, -1')
        self.stamp(12, VS)
        self.lab(l_e4)
        l_end = self.newlab('dend')
        e('s_cmp_lg_u32 s3, 0'); e(f's_cbranch_scc1 {l_end}')
        R = 64
        self.sum_partials('s69', 7, R, VP0, 16)
        self.stamp(13, VS)
        self.rbf(R, 16)
        e(f'v_mul_f32 v{R}, v{GB}, v{R}'); self.rbf(R, 16)
        e(f'v_add_f32 v{R}, v{X2V}, v{R}')
        e(f'v_cvt_pk_bf16_f32 v{R}, v{R}, v{R}')
        e(f'buffer_store_short v{R}, v7, s[88:91], s26 offen')
        self.stamp(14, VS)
        self.lab(l_end)
        self.stamp_flush(VS, 16)
        e('s_endpgm')

    def build(self):
        e = self.e
        e('s_cmp_ge_u32 s2, 256'); e('s_cbranch_scc1 L_exit')
        e('s_load_dwordx16 s[36:51], s[0:1], 0')
        e('s_load_dwordx8 s[52:59], s[0:1], 64')
        e('s_load_dwordx4 s[60:63], s[0:1], 96')
        e('v_lshrrev_b32 v2, 6, v0'); e('v_and_b32 v1, 63, v0')
        e('v_readfirstlane_b32 s3, v2')
        e('s_cmp_lt_u32 s2, 32'); e('s_cbranch_scc1 L_dense')
        self.attention()
        self.lab('L_dense')
        self.dense()
        self.lab('L_exit')
        e('s_endpgm')
        body = fix_hazards(self.L)
        out = [HEADER.rstrip('\n'),
               '; @launch grid=(256,1,1) block=(512,1,1) lds=%d' % LDS_BYTES,
               '.amdgcn_target "amdgcn-amd-amdhsa--gfx950"', '.text', f'.globl {NAME}_kernel', '.p2align 8',
               f'.type {NAME}_kernel,@function', f'{NAME}_kernel:'] + body + [
               '.section .rodata,"a"', '.p2align 6', f'.amdhsa_kernel {NAME}_kernel',
               '  .amdhsa_next_free_vgpr 256', '  .amdhsa_next_free_sgpr 102', '  .amdhsa_accum_offset 256',
               '  .amdhsa_group_segment_fixed_size 0', '  .amdhsa_kernarg_size 112', '  .amdhsa_user_sgpr_count 2',
               '  .amdhsa_user_sgpr_kernarg_segment_ptr 1', '  .amdhsa_system_sgpr_workgroup_id_x 1',
               '  .amdhsa_float_denorm_mode_32 3', '.end_amdhsa_kernel']
        return '\n'.join(out) + '\n'

if __name__ == '__main__':
    import argparse
    ap = argparse.ArgumentParser()
    ap.add_argument('-o', default='cdna_kernels/' + NAME + '.s')
    ap.add_argument('--stamps', action='store_true')
    ap.add_argument('--spin', type=int, default=1 << 22)
    ap.add_argument('--depth', type=int, default=4)
    ap.add_argument('--fpos', type=int, default=12)
    a = ap.parse_args()
    open(a.o, 'w').write(G(stamps=a.stamps, spin=a.spin, depth=a.depth, fpos=a.fpos).build())
```

```python
import sys
from asmlib import fix_hazards, VM
NAME = 'adaLN_cond__gqa_block_cached__geglu_ffn__decode'

WS_SAP, WS_MOD, WS_X2, WS_Q, WS_BLK, WS_STAMP = 0x0, 0x8000 - 2 * 4096, 0xC000, 0x10000, 0x20000, 0x200000
LDS_BYTES = 26624
BLK_OP, BLK_ML, BLK_Y, BLK_Z, BLK_SZ = 0x0, 0x3800, 0x4000, 0x6000, 0x8000
WS_BYTES = 0x400000
DBG_C, DBG_F = 0, 128
SCS, OBS, ACS = 1056, 288, 160
L_SC = 0; L_RED = 4352; L_STAT = L_RED + 16384; L_OB = L_STAT + 64; L_ACT = L_OB + 1152; L_R2 = 23040
LOG2E = 0x3fb8aa3b
SCALE = 0x3db504f3
NEG_INF = 0xff800000
MFMA = 'v_mfma_f32_16x16x32_bf16'

HEADER = open('cdna_kernels/' + NAME + '.s.ref').read().split('; Override launch')[0]

def vr(a, n): return f'v[{a}:{a+n-1}]' if n > 1 else f'v{a}'

class G:
    def __init__(self, depth=4, npre=16, fpos=9, stamps=False, spin=1 << 17, nt_w=True, nt_mod=True, dry=True, nt_kv=True, ldepth=6, wq_early=2, codepf=0, wdepth=4, d0=2, n0=24):
        self.L = []
        self.depth, self.npre, self.fpos, self.stamps, self.spin = depth, npre, fpos, stamps, spin
        self.nt_w, self.nt_mod, self.dry, self.nt_kv, self.ldepth = nt_w, nt_mod, dry, nt_kv, ldepth
        self.wq_early, self.codepf, self.wdepth, self.d0, self.n0 = wq_early, codepf, wdepth, d0, n0
        self.nlab = 0
    def e(self, s): self.L.append('  ' + s)
    def lab(self, s): self.L.append(s + ':')
    def newlab(self, p):
        self.nlab += 1
        return f'L_{p}{self.nlab}'
    def srd(self, base, ptr, nbytes):
        e = self.e
        e(f's_mov_b32 s{base}, s{ptr}'); e(f's_mov_b32 s{base+1}, s{ptr+1}')
        e(f's_mov_b32 s{base+2}, {hex(nbytes)}'); e(f's_mov_b32 s{base+3}, 0x20000')
    def stamp(self, i, vS):
        if not self.stamps: return
        e = self.e
        e('s_memrealtime s[34:35]'); e('s_waitcnt lgkmcnt(0)'); e(f'v_writelane_b32 v{vS}, s34, {i}')
    def stamp_flush(self, vS, vtmp):
        if not self.stamps: return
        e = self.e
        e('s_mov_b64 exec, -1')
        e('s_lshl_b32 s24, s2, 3'); e('s_add_u32 s24, s24, s3'); e('s_lshl_b32 s24, s24, 8'); e(f's_add_u32 s24, s24, {WS_STAMP}')
        e(f'v_lshlrev_b32 v{vtmp}, 2, v1')
        e(f'buffer_store_dword v{vS}, v{vtmp}, s[12:15], s24 offen')
    def rbf(self, x, t=None):
        t = x if t is None else t
        self.e(f'v_cvt_pk_bf16_f32 v{t}, v{x}, v{x}'); self.e(f'v_and_b32 v{x}, 0xffff0000, v{t}')
    def rbf2(self, a, b, t):
        self.e(f'v_cvt_pk_bf16_f32 v{t}, v{a}, v{b}')
        self.e(f'v_lshlrev_b32 v{a}, 16, v{t}'); self.e(f'v_and_b32 v{b}, 0xffff0000, v{t}')
    def allred(self, op, x, t, lanes=64, first=1):
        e = self.e
        steps = {1: 'quad_perm:[1,0,3,2]', 2: 'quad_perm:[2,3,0,1]', 4: 'row_half_mirror', 8: 'row_mirror'}
        s = first
        while s < lanes:
            if s < 16:
                ctl = steps[s] if first == 1 else f'row_ror:{s}'
                e(f'{op}_dpp v{x}, v{x}, v{x} {ctl} row_mask:0xf bank_mask:0xf')
            else:
                e(f'v_mov_b32 v{t}, v{x}')
                e(f'v_permlane{s}_swap_b32 v{x}, v{t}')
                e(f'{op} v{x}, v{x}, v{t}')
            s *= 2
    def poll_counter(self, voff_imm_soff, target, vt, sleep=1):
        e = self.e
        l0, l1 = self.newlab('pc'), self.newlab('pcd')
        e('s_mov_b32 s31, 0')
        self.lab(l0)
        e(f'buffer_load_dword v{vt}, off, s[16:19], {voff_imm_soff} sc1')
        e('s_waitcnt vmcnt(0)')
        e(f'v_readfirstlane_b32 s24, v{vt}')
        e(f's_cmp_ge_u32 s24, {target}')
        e(f's_cbranch_scc1 {l1}')
        e('s_add_u32 s31, s31, 1')
        e(f's_cmp_ge_u32 s31, {self.spin}')
        e(f's_cbranch_scc1 {l1}')
        if sleep: e(f's_sleep {sleep}')
        e(f's_branch {l0}')
        self.lab(l1)
    def poll_flags(self, voff, vt, sleep, first=True):
        e = self.e
        l0, l1, lc = self.newlab('pf'), self.newlab('pfd'), self.newlab('pfc')
        e('s_mov_b32 s31, 0')
        if not first: e(f's_branch {lc}')
        self.lab(l0)
        e(f'buffer_load_dword v{vt}, v{voff}, s[16:19], 0 offen sc1')
        e('s_waitcnt vmcnt(0)')
        self.lab(lc)
        e(f'v_cmp_gt_u32 vcc, 32, v{vt}')
        e(f's_cbranch_vccz {l1}')
        e('s_add_u32 s31, s31, 1')
        e(f's_cmp_ge_u32 s31, {self.spin}')
        e(f's_cbranch_scc1 {l1}')
        if sleep: e(f's_sleep {sleep}')
        e(f's_branch {l0}')
        self.lab(l1)
    def poll_wg(self, items, vt, sleep=2):
        l = self.newlab('pw')
        self.e('s_cmp_lg_u32 s3, 0'); self.e(f's_cbranch_scc1 {l}')
        for off, target in items: self.poll_counter(off, target, vt, sleep)
        self.lab(l)
        self.e('s_barrier')
    def sent_check(self, regs, vt, sent=-1):
        e = self.e
        rs = list(regs)
        if len(rs) == 1: cur = rs[0]
        elif len(rs) == 2:
            e(f'v_max_u32 v{vt}, v{rs[0]}, v{rs[1]}'); cur = vt
        else:
            e(f'v_max3_u32 v{vt}, v{rs[0]}, v{rs[1]}, v{rs[2]}'); rs = rs[3:]; cur = vt
            while len(rs) >= 2:
                e(f'v_max3_u32 v{vt}, v{vt}, v{rs[0]}, v{rs[1]}'); rs = rs[2:]
            if rs: e(f'v_max_u32 v{vt}, v{vt}, v{rs[0]}')
        e(f'v_cmp_eq_u32 vcc, {sent}, v{cur}')
    def poll_data(self, loads, regs, vt, sleep=0, sent=-1):
        e = self.e
        l0, l1 = self.newlab('pd'), self.newlab('pdd')
        e('s_mov_b32 s31, 0')
        self.lab(l0)
        for s in loads: e(s)
        e('s_waitcnt vmcnt(0)')
        self.sent_check(regs, vt, sent)
        e(f's_cbranch_vccz {l1}')
        e('s_add_u32 s31, s31, 1')
        e(f's_cmp_ge_u32 s31, {self.spin}')
        e(f's_cbranch_scc1 {l1}')
        if sleep: e(f's_sleep {sleep}')
        e(f's_branch {l0}')
        self.lab(l1)
    def perm_op(self, dst, raw, width, m, npair=4):
        sel = 's28' if (m & 1) else 's27'
        for t in range(npair):
            self.e(f'v_perm_b32 v{dst+t}, v{raw[2*t+1] + (m >> 1)}, v{raw[2*t] + (m >> 1)}, {sel}')

    def attention(self, npc, NP, stride, fpos, D, late):
        e = self.e; vm = VM(e)
        nt = ' nt' if self.nt_kv else ''
        nst = npc // 8
        KB = 8; VP = KB + 4 * npc
        Q = 232; X = 236; Y = 244; VF = 252; VS = 255; TMP = 254
        assert VP + 4 * NP <= Q
        K = lambda i: KB + 4 * i
        V = lambda i: (VP + 4 * i) if (i < NP or late) else K(i - NP)
        free0 = VP + 4 * npc if late else K(npc - NP)
        ACC = free0; PT = ACC + 32; MISC = PT + 12
        PX = X; PR = X + 4; PY = Y
        assert MISC + 12 <= (Q if late else VP)
        e('s_lshr_b32 s25, s20, 3'); e('s_and_b32 s26, s20, 7')
        e('s_lshl_b32 s24, s20, 21')
        e('v_lshlrev_b32 v3, 4, v1')
        e('v_and_b32 v2, 12, v1'); e('v_lshlrev_b32 v2, 6, v2')
        e('v_and_b32 v4, 48, v1'); e('v_lshl_add_u32 v2, v4, 2, v2')
        e('v_and_b32 v4, 3, v1'); e('v_lshl_add_u32 v2, v4, 4, v2')
        if not late: e('s_waitcnt lgkmcnt(0)')
        for base, p in ((4, 38), (8, 40)):
            e(f's_add_u32 s{base}, s{p}, s24'); e(f's_addc_u32 s{base+1}, s{p+1}, 0')
            e(f's_mov_b32 s{base+2}, 0x200000'); e(f's_mov_b32 s{base+3}, 0x20000')
        e('s_mov_b32 s22, s23')
        def ld(kind, i):
            srd, so = ('s[4:7]', 's22') if kind == 'K' else ('s[8:11]', 's23')
            r = K(i) if kind == 'K' else V(i)
            e(f'buffer_load_dwordx4 {vr(r,4)}, {"v2" if kind == "K" else "v3"}, {srd}, {so} offen{nt}')
            if i + 1 < npc: e(f's_add_u32 {so}, {so}, s78')
            vm.issue(f'{kind}{i}')
        e(f's_mov_b32 s78, {stride}')
        D0, N0 = (D, 0) if late else (self.d0, self.n0)
        for i in range(D0 + 1): ld('K', i)
        if not late:
            self.srd(12, 62, WS_BYTES); self.srd(16, 60, 256)
            if self.stamps: e(f'v_mov_b32 v{VS}, 0')
            self.stamp(0, VS)
            e('s_mov_b32 s27, 0x05040100'); e('s_mov_b32 s28, 0x07060302'); e(f's_mov_b32 s30, {hex(LOG2E)}')
        e(f's_mov_b32 s29, {hex(SCALE)}')
        e('v_lshlrev_b32 v6, 8, v4'); e('v_lshrrev_b32 v7, 2, v1'); e('v_lshl_add_u32 v6, v7, 4, v6')
        for i in range(8): e(f'v_mov_b32 v{(Y if nst > 4 else X)+i}, {hex(NEG_INF)}')
        e('v_lshrrev_b32 v5, 5, v1'); e(f'v_mul_u32_u24 v5, {DBG_F + 8}, v5')
        e('s_lshl_b32 s65, s25, 13'); e('s_lshl_b32 s66, s26, 10'); e('s_add_u32 s65, s65, s66'); e(f's_add_u32 s65, s65, {WS_Q}')
        seq = [('K', i) for i in range(D0 + 1, npc)] + [('V', i) for i in range(NP)]
        qidx = (npc - D0 - 1) + fpos
        qld = f'buffer_load_dwordx4 {vr(Q,4)}, v6, s[12:15], s65 offen sc1'
        for n, (kind, i) in enumerate(seq):
            vm.throttle(D0 if n + D0 + 1 < N0 else D); ld(kind, i)
            if n == max(qidx - D - 2, 0):
                e(f'buffer_load_dword v{VF}, v5, s[16:19], 0 offen sc1'); vm.issue('F')
            if n == qidx:
                vm.wait('F')
                self.poll_flags(5, VF, 8, first=False)
                e(qld); vm.issue('Q')
        assert 0 <= qidx < len(seq)
        vm.wait('Q')
        ok = self.newlab('qok')
        self.sent_check(range(Q, Q + 4), VF)
        e(f's_cbranch_vccz {ok}')
        self.poll_data([qld], range(Q, Q + 4), VF, sleep=4)
        self.lab(ok)
        self.stamp(17, VS)
        vm.wait(f'K{npc-1}')
        nxt = [NP]
        def more(n=1):
            for _ in range(n):
                if nxt[0] < npc: ld('V', nxt[0]); nxt[0] += 1
        groups = [list(range(i, min(i + 3, npc))) for i in range(0, npc, 3)]
        def mf(i): e(f'{MFMA} {vr(K(i),4)}, {vr(K(i),4)}, {vr(Q,4)}, 0')
        def dpp(i, s):
            n = (i >> 3) if i < 32 else 0
            dst = X + (i & 7) if i < 32 else Y + (i - 32)
            c = (n + 1 + s) & 3
            src1 = K(i) + n if s == 0 else dst
            e(f'v_add_f32_dpp v{dst}, v{K(i)+c}, v{src1} row_ror:{(4 * (n - c)) % 16} row_mask:0xf bank_mask:{hex(1 << n)}')
        for g in groups[:2]:
            for i in g: mf(i)
        for gi, g in enumerate(groups):
            ahead = groups[gi + 2] if gi + 2 < len(groups) else []
            for s in range(3):
                if s < len(ahead): mf(ahead[s])
                for i in g: dpp(i, s)
            if gi in (0, 1, 4, 7, 10): more()
        S = [X + i for i in range(8)] + ([Y + i for i in range(8)] if nst > 4 else [])
        T0 = MISC
        for rep in range(2):
            for a in range(0, len(S), 2): self.rbf2(S[a], S[a + 1], T0 + (a >> 1) % 4)
            if rep == 0:
                for r in S: e(f'v_mul_f32 v{r}, s29, v{r}')
        more()
        M = MISC + 4; Ls = MISC + 5; NM = MISC + 6
        e(f'v_max_f32 v{M}, v{S[0]}, v{S[1]}')
        for a in range(2, len(S), 2): e(f'v_max3_f32 v{M}, v{M}, v{S[a]}, v{S[a+1]}')
        self.allred('v_max_f32', M, T0, 64, first=4)
        e(f'v_mul_f32 v{NM}, s30, v{M}')
        for r in S: e(f'v_fma_f32 v{r}, v{r}, s30, -v{NM}')
        for r in S: e(f'v_exp_f32 v{r}, v{r}')
        more()
        e(f'v_add_f32 v{Ls}, v{S[0]}, v{S[1]}')
        for r in S[2:]: e(f'v_add_f32 v{Ls}, v{Ls}, v{r}')
        for t in range(4): e(f'v_cvt_pk_bf16_f32 v{PX+t}, v{X+2*t}, v{X+2*t+1}')
        if nst > 4:
            for t in range(4): e(f'v_cvt_pk_bf16_f32 v{PY+t}, v{Y+2*t}, v{Y+2*t+1}')
        self.allred('v_add_f32', Ls, T0, 64, first=4)
        LDS_ML = 8 * 2112
        e('s_lshl_b32 s24, s3, 5'); e(f's_add_u32 s24, s24, {LDS_ML}')
        e(f'v_lshl_add_u32 v{T0}, v1, 3, s24')
        e('s_mov_b64 exec, 15')
        e(f'ds_write_b64 v{T0}, {vr(M,2)}')
        e('s_mov_b64 exec, -1')
        self.stamp(18, VS)
        def pop(n):
            if n == 0: return PX
            if n == 4: return PY
            for t in range(4): e(f'v_mov_b32_dpp v{PR+t}, v{PX+t} row_ror:{16 - 4*n} row_mask:0xf bank_mask:0xf')
            return PR
        def pv(n, hooks=()):
            P = pop(n)
            raw = [V(8 * n + x) for x in range(8)]
            self.perm_op(PT, raw, 4, 0)
            for m in range(8):
                if m + 1 < 8: self.perm_op(PT + 4 * ((m + 1) % 3), raw, 4, m + 1)
                c = '0' if n == 0 else vr(ACC + 4 * m, 4)
                e(f'{MFMA} {vr(ACC+4*m,4)}, {vr(PT+4*(m%3),4)}, {vr(P,4)}, {c}')
                if m in hooks: more()
        for n in range(nst - 1):
            last = 8 * n + 7
            while nxt[0] < min(npc, last + D + 2):
                vm.throttle(D); more()
            vm.wait(f'V{last}')
            pv(n, (3,))
        while nxt[0] < npc:
            vm.throttle(D); more()
        e('s_waitcnt lgkmcnt(0)'); e('s_barrier')
        A0 = MISC; MW = MISC + 8; SC = MISC + 7
        e('s_lshr_b32 s66, s3, 1')
        e('s_lshl_b32 s24, s66, 3'); e(f's_add_u32 s24, s24, {LDS_ML}')
        e(f'v_and_b32 v{A0}, 7, v1'); e(f'v_lshl_add_u32 v{A0}, v{A0}, 5, s24')
        e(f'ds_read_b64 {vr(MW,2)}, v{A0}')
        e('s_lshl_b32 s67, s26, 2'); e('s_add_u32 s67, s67, s66'); e(f's_mul_i32 s67, s67, {BLK_SZ}'); e(f's_add_u32 s67, s67, {WS_BLK}')
        e('s_lshl_b32 s24, s25, 6'); e('s_lshl_b32 s76, s21, 3'); e('s_add_u32 s24, s24, s76'); e('s_add_u32 s24, s24, s67')
        e(f's_add_u32 s79, s24, {BLK_ML}')
        e('s_waitcnt lgkmcnt(0)')
        e(f'v_mov_b32 v{M}, v{MW}')
        self.allred('v_max_f32', M, T0, 8)
        e(f'v_sub_f32 v{SC}, v{MW}, v{M}'); e(f'v_mul_f32 v{SC}, s30, v{SC}'); e(f'v_exp_f32 v{SC}, v{SC}')
        e(f'v_mul_f32 v{Ls}, v{SC}, v{MW+1}')
        self.allred('v_add_f32', Ls, T0, 8)
        e('s_mov_b64 exec, 1')
        e(f'buffer_store_dwordx2 {vr(M,2)}, off, s[12:15], s79 sc1'); vm.issue('ML')
        e('s_mov_b64 exec, -1')
        for w in range(8): e(f'v_readlane_b32 s{68+w}, v{SC}, {w}')
        AW = MISC; AR = MISC + 1; AO = MISC + 2
        e('s_mul_i32 s24, s3, 2112')
        e(f'v_mul_u32_u24 v{AW}, 528, v4'); e(f'v_and_b32 v{AR}, 48, v1')
        e(f'v_add3_u32 v{AW}, v{AW}, v{AR}, s24')
        e('s_mul_i32 s24, s66, 528'); e('s_and_b32 s76, s3, 1'); e('s_lshl_b32 s76, s76, 8'); e('s_add_u32 s24, s24, s76')
        e(f'v_lshl_add_u32 v{AR}, v1, 2, s24')
        e(f'v_lshlrev_b32 v{AO}, 2, v1')
        e('s_mul_i32 s24, s25, 7'); e('s_add_u32 s24, s24, s21'); e('s_lshl_b32 s24, s24, 9'); e('s_add_u32 s77, s24, s67'); e('s_add_u32 s77, s77, s76')
        e('s_mov_b32 s32, 0x000f000f'); e('s_mov_b32 s33, 0x000f000f')
        self.stamp(19, VS)
        n = nst - 1
        P = pop(n)
        OPB = V(0)
        raw = [V(8 * n + x) for x in range(8)]
        for t in range(4):
            vm.wait(f'V{8*n + 2*t + 1}')
            if t == 3: self.stamp(20, VS)
            for m in range(8):
                sel = 's28' if (m & 1) else 's27'
                e(f'v_perm_b32 v{OPB+4*m+t}, v{raw[2*t+1] + (m >> 1)}, v{raw[2*t] + (m >> 1)}, {sel}')
                if t == 3 and m >= 2:
                    mm = m - 2
                    e(f'{MFMA} {vr(ACC+4*mm,4)}, {vr(OPB+4*mm,4)}, {vr(P,4)}, {vr(ACC+4*mm,4)}')
        for mm in (6, 7): e(f'{MFMA} {vr(ACC+4*mm,4)}, {vr(OPB+4*mm,4)}, {vr(P,4)}, {vr(ACC+4*mm,4)}')
        e('s_mov_b64 exec, s[32:33]')
        for m in range(8): e(f'ds_write_b128 v{AW}, {vr(ACC+4*m,4)} offset:{64*m}')
        e('s_mov_b64 exec, -1')
        e('s_waitcnt lgkmcnt(0)'); e('s_barrier')
        R0 = PT
        for w in range(8): e(f'ds_read_b32 v{R0+w}, v{AR} offset:{2112*w}')
        e('s_waitcnt lgkmcnt(0)')
        e(f'v_mul_f32 v{R0}, s68, v{R0}')
        for w in range(1, 8): e(f'v_fmac_f32 v{R0}, s{68+w}, v{R0+w}')
        e(f'buffer_store_dword v{R0}, v{AO}, s[12:15], s77 offen sc1')
        self.stamp(21, VS)
        self.stamp_flush(VS, TMP)
        e('s_endpgm')

    def stats(self, xs, t0):
        e = self.e
        s, t, mean, ss = t0, t0 + 1, t0 + 2, t0 + 3
        e(f'v_add_f32 v{s}, v{xs[0]}, v{xs[1]}')
        for r in xs[2:]: e(f'v_add_f32 v{s}, v{s}, v{r}')
        self.allred('v_add_f32', s, t)
        e(f'v_mul_f32 v{mean}, 0x3b000000, v{s}')
        e(f'v_sub_f32 v{t}, v{xs[0]}, v{mean}'); e(f'v_mul_f32 v{ss}, v{t}, v{t}')
        for r in xs[1:]:
            e(f'v_sub_f32 v{t}, v{r}, v{mean}'); e(f'v_fmac_f32 v{ss}, v{t}, v{t}')
        self.allred('v_add_f32', ss, t)
        e(f'v_mul_f32 v{ss}, 0x3b000000, v{ss}')
        self.rbf2(mean, ss, t)
        e(f'v_add_f32 v{ss}, 0x3727c5ac, v{ss}')
        self.rbf(ss, t)
        e(f'v_sqrt_f32 v{ss}, v{ss}')
        self.rbf(ss, t)
        e(f'v_rcp_f32 v{ss}, v{ss}')
        return mean, ss

    def tile_mfma_raw(self, raw_base, aop, acc, pt, width=4):
        e = self.e
        nm = 2 * width
        seq = [(kap, m) for kap in range(2) for m in range(nm)]
        raw = (lambda kap: [raw_base + 32 * kap + 4 * x for x in range(8)]) if width == 4 else (lambda kap: [raw_base + 4 * x + 2 * kap for x in range(8)])
        if width == 2: self.half_swap([raw_base + 4 * x for x in range(8)], pt)
        self.perm_op(pt, raw(0), width, 0)
        for i, (kap, m) in enumerate(seq):
            if i + 1 < len(seq):
                k2, m2 = seq[i + 1]
                self.perm_op(pt + 4 * ((i + 1) % 3), raw(k2), width, m2)
            c = '0' if kap == 0 else vr(acc + 4 * m, 4)
            e(f'{MFMA} {vr(acc+4*m,4)}, {vr(aop[kap],4)}, {vr(pt+4*(i%3),4)}, {c}')

    def red_write(self, acc, vaddr, nm=8, off=0):
        e = self.e
        e('s_mov_b64 exec, 0xffff')
        for m in range(nm): e(f'ds_write_b128 v{vaddr}, {vr(acc+4*m,4)} offset:{off + 256*m}')
        e('s_mov_b64 exec, -1')

    def sum_partials(self, base_s, n, R, voff, vt, vw, vl4):
        e = self.e
        skip = self.newlab('sp')
        if n < 8:
            e(f's_cmp_ge_u32 s3, {n}'); e(f's_cbranch_scc1 {skip}')
        self.poll_data([f'buffer_load_dwordx4 {vr(R,4)}, v{voff}, s[12:15], {base_s} offen sc1'], range(R, R + 4), vt)
        e(f'v_permlane32_swap_b32 v{R}, v{R+2}'); e(f'v_permlane32_swap_b32 v{R+1}, v{R+3}')
        e(f'v_add_f32 v{R}, v{R}, v{R+2}'); e(f'v_add_f32 v{R+1}, v{R+1}, v{R+3}')
        e(f'v_permlane16_swap_b32 v{R}, v{R+1}')
        e(f'v_add_f32 v{R}, v{R}, v{R+1}')
        e(f'ds_write_b32 v{vw}, v{R} offset:{L_R2}')
        self.lab(skip)
        self.ebar()

    def sum_finish(self, n, R, vl4):
        e = self.e
        for w in range(0, n - 1, 2): e(f'ds_read2st64_b32 {vr(R+w,2)}, v{vl4} offset0:{L_R2//256 + w} offset1:{L_R2//256 + w + 1}')
        if n & 1: e(f'ds_read_b32 v{R+n-1}, v{vl4} offset:{L_R2 + 256*(n-1)}')
        e('s_waitcnt lgkmcnt(0)')
        pairs = ((0, 1), (2, 3), (4, 5), (6, 7), (0, 2), (4, 6), (0, 4))
        for a, b in pairs:
            if b < n: e(f'v_add_f32 v{R+a}, v{R+a}, v{R+b}')

    def half_swap(self, quads, t):
        e = self.e
        for i in range(0, len(quads), 2):
            qs = quads[i:i + 2]
            for k, R in enumerate(qs):
                for h in range(2): e(f'v_mov_b32_dpp v{t+2*k+h}, v{R+h} row_ror:8 row_mask:0xf bank_mask:0xf')
            for k, R in enumerate(qs):
                for h in range(2): e(f'v_mov_b32_dpp v{R+h}, v{R+2+h} row_ror:8 row_mask:0xf bank_mask:0xc')
            for k, R in enumerate(qs):
                for h in range(2): e(f'v_mov_b32_dpp v{R+2+h}, v{t+2*k+h} quad_perm:[0,1,2,3] row_mask:0xf bank_mask:0x3')

    def cross_swap(self, G_, U_, n, t):
        e = self.e
        for i in range(0, n, 4):
            for k in range(4): e(f'v_mov_b32_dpp v{t+k}, v{G_+i+k} row_ror:8 row_mask:0xf bank_mask:0xf')
            for k in range(4): e(f'v_mov_b32_dpp v{G_+i+k}, v{U_+i+k} row_ror:8 row_mask:0xf bank_mask:0xc')
            for k in range(4): e(f'v_mov_b32_dpp v{U_+i+k}, v{t+k} quad_perm:[0,1,2,3] row_mask:0xf bank_mask:0x3')

    def common_lane(self, J, Gg):
        e = self.e
        e(f'v_and_b32 v{J}, 15, v1'); e(f'v_lshrrev_b32 v{Gg}, 4, v1')
        e('s_lshl_b32 s29, s3, 7')
        e(f'v_lshlrev_b32 v7, 10, v{Gg}'); e(f'v_lshl_add_u32 v11, v{J}, 3, v7')

    def lds_addrs(self, J, Gg):
        e = self.e
        e(f'v_and_b32 v8, 3, v1'); e(f'v_mul_u32_u24 v8, {SCS}, v8'); e(f'v_lshl_add_u32 v8, v{Gg}, 4, v8')
        e('v_add_u32 v8, s29, v8')
        e('s_lshl_b32 s24, s3, 11'); e(f's_add_u32 s24, s24, {L_RED}'); e(f'v_lshl_add_u32 v9, v{J}, 4, s24')

    def silu_to_lds(self, vm, CV, T, vc_off, vtmp):
        e = self.e
        e('s_mov_b32 s93, 0x32a5705f')
        vm.wait('c')
        c = [T + 8 + i for i in range(4)]; t = [T + 12 + i for i in range(4)]; u = [T + 16 + i for i in range(4)]; w_ = [T + 20 + i for i in range(4)]
        e(f'v_lshlrev_b32 v{c[0]}, 16, v{CV}'); e(f'v_and_b32 v{c[1]}, 0xffff0000, v{CV}')
        e(f'v_lshlrev_b32 v{c[2]}, 16, v{CV+1}'); e(f'v_and_b32 v{c[3]}, 0xffff0000, v{CV+1}')
        for i in range(4): e(f'v_mul_f32 v{t[i]}, s30, v{c[i]}')
        for i in range(4): e(f'v_fma_f32 v{u[i]}, v{c[i]}, s30, -v{t[i]}')
        for i in range(4): e(f'v_fma_f32 v{u[i]}, v{c[i]}, s93, v{u[i]}')
        for i in range(4): e(f'v_rndne_f32 v{w_[i]}, v{t[i]}')
        for i in range(4): e(f'v_sub_f32 v{t[i]}, v{t[i]}, v{w_[i]}')
        for i in range(4): e(f'v_add_f32 v{t[i]}, v{t[i]}, v{u[i]}')
        for i in range(4): e(f'v_exp_f32 v{t[i]}, -v{t[i]}')
        for i in range(4): e(f'v_cvt_i32_f32 v{w_[i]}, -v{w_[i]}')
        for i in range(4): e(f'v_ldexp_f32 v{t[i]}, v{t[i]}, v{w_[i]}')
        for i in range(4): e(f'v_add_f32 v{t[i]}, 1.0, v{t[i]}')
        for i in range(4): e(f'v_rcp_f32 v{u[i]}, v{t[i]}')
        for i in range(4): e(f'v_fma_f32 v{w_[i]}, -v{t[i]}, v{u[i]}, 1.0')
        for i in range(4): e(f'v_fma_f32 v{u[i]}, v{w_[i]}, v{u[i]}, v{u[i]}')
        for i in range(4): e(f'v_mul_f32 v{w_[i]}, v{c[i]}, v{u[i]}')
        for i in range(4): e(f'v_fma_f32 v{T+24+i}, -v{t[i]}, v{w_[i]}, v{c[i]}')
        for i in range(4): e(f'v_fma_f32 v{w_[i]}, v{T+24+i}, v{u[i]}, v{w_[i]}')
        for i in range(4): e(f'v_div_fixup_f32 v{c[i]}, v{w_[i]}, v{t[i]}, v{c[i]}')
        e(f'v_cvt_pk_bf16_f32 v{CV}, v{c[0]}, v{c[1]}'); e(f'v_cvt_pk_bf16_f32 v{CV+1}, v{c[2]}, v{c[3]}')
        e(f'v_lshrrev_b32 v{vtmp}, 7, v0'); e(f'v_lshl_add_u32 v{vtmp}, v{vtmp}, 5, v{vc_off}')
        e(f'ds_write_b64 v{vtmp}, {vr(CV,2)} offset:{L_SC}')

    def sap_addr(self, J, Gg):
        e = self.e
        e(f'v_lshrrev_b32 v10, 3, v{J}'); e(f'v_lshl_add_u32 v10, v{Gg}, 1, v10')
        e(f'v_and_b32 v5, 7, v{J}'); e('v_lshlrev_b32 v5, 4, v5')
        e(f'v_mul_u32_u24 v6, {4*6144}, v10'); e('v_add_u32 v6, v6, v5')
        e(f'v_and_b32 v10, 8, v{J}'); e('v_add3_u32 v5, v10, v5, v7'); e('v_lshlrev_b32 v5, 1, v5')
        e('v_lshlrev_b32 v30, 3, v0')
        e('s_lshr_b32 s98, s20, 4'); e('s_lshl_b32 s99, s98, 3'); e('s_add_u32 s99, s99, s3')
        e(f's_mul_i32 s92, s99, {32*6144}'); e('s_and_b32 s24, s20, 15'); e('s_lshl_b32 s24, s24, 7'); e('s_add_u32 s92, s92, s24')
        e('s_movk_i32 s97, 6144')

    def mod_addr(self, J, Gg, sblk):
        e = self.e
        e(f'v_lshrrev_b32 v10, 3, v{J}'); e(f'v_lshl_add_u32 v10, v10, 2, v{Gg}')
        e(f'v_and_b32 v5, 7, v{J}'); e('v_lshlrev_b32 v5, 4, v5')
        e(f'v_mul_u32_u24 v6, {8*6144}, v10'); e('v_add_u32 v6, v6, v5')
        e(f'v_and_b32 v10, 8, v{J}'); e('v_add3_u32 v5, v10, v5, v7')
        e('v_lshlrev_b32 v30, 3, v0')
        e(f's_mul_i32 s92, s3, {64*6144}'); e(f's_lshl_b32 s24, {sblk}, 7'); e('s_add_u32 s92, s92, s24')
        e('s_movk_i32 s97, 6144')

    def mod_loads(self, vm, CV, raw, n=8):
        e = self.e
        ntm = ' nt' if self.nt_mod else ''
        self.srd(4, 56, 512 * 6144); self.srd(68, 54, 4096)
        e(f'buffer_load_dwordx2 {vr(CV,2)}, v30, s[68:71], 0 offen'); vm.issue('c')
        for i in range(n):
            e(f'buffer_load_dwordx4 {vr(raw+4*i,4)}, v6, s[4:7], s92 offen{ntm}'); vm.issue('wmod')
            if i < n - 1: e('s_add_u32 s92, s92, s97')

    def mod_mfma(self, vm, raw, J, Gg, ACC, PT, VS):
        e = self.e
        AOP = ACC + 16
        e(f'ds_read_b128 {vr(AOP,4)}, v8 offset:{L_SC}'); e(f'ds_read_b128 {vr(AOP+4,4)}, v8 offset:{L_SC+64}')
        e(f'v_lshlrev_b32 v10, 4, v{J}'); e(f'v_lshl_add_u32 v10, v{Gg}, 2, v10'); e(f'v_add_u32 v10, {L_RED}, v10')
        e('s_waitcnt lgkmcnt(0)')
        vm.wait('wmod')
        self.stamp(1, VS)
        self.tile_mfma_raw(raw, [AOP, AOP + 4], ACC, PT, 2)
        self.red_write(ACC, 9, 4)

    def mod_reduce(self, R):
        e = self.e
        for w in range(8):
            e(f'ds_read2st64_b32 {vr(R+4*w,2)}, v10 offset0:{8*w} offset1:{8*w+1}')
            e(f'ds_read2st64_b32 {vr(R+4*w+2,2)}, v10 offset0:{8*w+2} offset1:{8*w+3}')
        e('s_waitcnt lgkmcnt(0)')
        for a, b in ((0, 1), (2, 3), (4, 5), (6, 7), (0, 2), (4, 6), (0, 4)):
            for m in range(4): e(f'v_add_f32 v{R+4*a+m}, v{R+4*a+m}, v{R+4*b+m}')

    def q_prefix(self):
        e = self.e; vm = VM(e)
        ntw = ' nt' if self.nt_w else ''
        VS = 255; ACC = 32; PT = 16; T = 96; WQRAW = 128; MODRAW = 64; J, Gg = 2, 3
        XR = 12; XQ = T + 2; CV = T; VFL = T + 29
        self.sap_addr(J, Gg)
        e('s_cmp_eq_u32 s3, 0'); e('s_cselect_b32 s24, 0x40000000, 0'); e('v_add_u32 v29, s24, v28')
        e('s_waitcnt lgkmcnt(0)')
        self.mod_loads(vm, CV, MODRAW, 4)
        self.srd(64, 36, 4096); self.srd(8, 42, 512 * 8192)
        e(f'buffer_load_dwordx4 {vr(XR,4)}, v4, s[64:67], 0 offen'); vm.issue('x')
        e(f'buffer_load_dwordx2 {vr(XQ,2)}, v11, s[64:67], s29 offen'); vm.issue('xq')
        def wq_load(i, voff, so='s23', thr=False):
            if thr: e(f's_waitcnt vmcnt({self.wdepth})')
            e(f'buffer_load_dwordx4 {vr(WQRAW+4*i,4)}, v{voff}, s[8:11], {so} offen{ntw}'); vm.issue('wq')
            if i == 7: e(f's_add_u32 {so}, {so}, {25*8192}')
            elif i < 15: e(f's_add_u32 {so}, {so}, s78')
        ne = self.wq_early
        e('s_mov_b32 s96, s23')
        for i in range(ne): wq_load(i, 29)
        self.srd(12, 62, WS_BYTES); self.srd(16, 60, 256)
        if self.stamps: e(f'v_mov_b32 v{VS}, 0')
        self.stamp(0, VS)
        e('s_mov_b32 s27, 0x05040100'); e('s_mov_b32 s28, 0x07060302'); e(f's_mov_b32 s30, {hex(LOG2E)}')
        self.lds_addrs(J, Gg)
        self.silu_to_lds(vm, CV, T, 30, T + 28)
        e(f'v_lshrrev_b32 v{T+31}, 5, v1'); e(f'v_lshlrev_b32 v{T+31}, 3, v{T+31}'); e(f'v_add_u32 v{T+31}, {DBG_F}, v{T+31}')
        e('s_cmp_eq_u32 s3, 0'); e('s_cselect_b32 s24, 0, 0x40000000'); e(f'v_add_u32 v{T+27}, s24, v{T+31}')
        e(f'buffer_load_dword v{VFL}, v{T+27}, s[16:19], 0 offen sc1'); vm.issue('F')
        e('s_lshl_b32 s24, s99, 6'); e('s_sub_u32 s24, s24, s29'); e(f'v_add_u32 v{T+30}, s24, v8')
        e(f'v_lshlrev_b32 v10, 4, v{J}'); e(f'v_lshl_add_u32 v10, v{Gg}, 2, v10'); e(f'v_add_u32 v10, {L_RED}, v10')
        e('s_waitcnt lgkmcnt(0)'); e('s_barrier')
        AOP = ACC + 16
        e(f'ds_read_b128 {vr(AOP,4)}, v{T+30} offset:{L_SC}')
        vm.wait('wmod')
        self.stamp(1, VS)
        self.half_swap([MODRAW + 4 * x for x in range(4)], PT)
        raw = [MODRAW + 4 * (x & 3) + 2 * (x >> 2) for x in range(8)]
        for m in range(4): self.perm_op(MODRAW + 16 + 4 * m, raw, 2, m)
        e('s_waitcnt lgkmcnt(0)')
        for m in range(4): e(f'{MFMA} {vr(ACC+4*m,4)}, {vr(AOP,4)}, {vr(MODRAW+16+4*m,4)}, 0')
        self.red_write(ACC, 9, 4)
        e('s_waitcnt lgkmcnt(0)'); e('s_barrier')
        l1 = self.newlab('qw')
        e('s_cmp_lg_u32 s3, 0'); e(f's_cbranch_scc1 {l1}')
        self.mod_reduce(MODRAW)
        e('s_lshr_b32 s94, s20, 3'); e('s_lshl_b32 s94, s94, 13'); e('s_and_b32 s95, s20, 7'); e('s_lshl_b32 s95, s95, 8'); e('s_add_u32 s94, s94, s95')
        e('s_waitcnt vmcnt(0)')
        self.poll_flags(T + 31, VFL, 1, first=False)
        e(f'buffer_store_dwordx4 {vr(MODRAW,4)}, v5, s[12:15], s94 offen sc1')
        for i in range(ne): wq_load(i, 28, 's96')
        self.lab(l1)
        self.stamp(2, VS)
        e(f's_waitcnt vmcnt({ne+1})')
        for i in range(ne, ne + 3): wq_load(i, 28)
        xs = list(range(T + 8, T + 16))
        for i in range(4):
            e(f'v_lshlrev_b32 v{xs[2*i]}, 16, v{XR+i}'); e(f'v_and_b32 v{xs[2*i+1]}, 0xffff0000, v{XR+i}')
        mean, rden = self.stats(xs, T + 16)
        e('s_lshl_b32 s24, s25, 3'); e(f'v_mov_b32 v{T+28}, s24')
        e('s_mov_b64 exec, 1')
        e(f'ds_write_b64 v{T+28}, {vr(mean,2)} offset:{L_STAT}')
        e('s_mov_b64 exec, -1')
        for i in range(ne + 3, 16): wq_load(i, 28, thr=True)

    def qrole(self):
        e = self.e
        VS = 255; ACC = 32; PT = 16; T = 96; WQRAW = 128; J, Gg = 2, 3
        XQ = T + 2
        e('s_sub_u32 s20, s2, 32')
        self.common_lane(J, Gg)
        e(f'v_lshlrev_b32 v28, 16, v{Gg}'); e(f'v_lshl_add_u32 v28, v{J}, 4, v28')
        e('s_and_b32 s25, s3, 3')
        e('s_lshl_b32 s24, s25, 10'); e('v_lshl_add_u32 v4, v1, 4, s24')
        e(f's_lshl_b32 s23, s3, 19'); e('s_lshl_b32 s24, s20, 8'); e('s_add_u32 s23, s23, s24')
        e('s_movk_i32 s78, 0x2000')
        self.q_prefix()
        e(f'v_lshlrev_b32 v{T+28}, 3, v{Gg}')
        e(f'v_add_u32 v{T+18}, s29, v11')
        e(f'v_lshl_add_u32 v{T+19}, v{Gg}, 5, v{T+18}')
        QR = T + 16; QS = T + 17
        e(f'v_and_b32 v{QR}, 3, v1'); e(f'v_lshlrev_b32 v{QR}, 9, v{QR}'); e(f'v_lshrrev_b32 v{QS}, 2, v1'); e(f'v_lshl_add_u32 v{QR}, v{QS}, 4, v{QR}')
        e('s_lshl_b32 s24, s25, 2'); e(f's_add_u32 s24, s24, {L_RED}'); e(f'v_add_u32 v{QR}, s24, v{QR}')
        e(f'v_lshlrev_b32 v{QS}, 2, v1')
        e('s_lshl_b32 s95, s25, 13'); e('s_lshl_b32 s94, s20, 8'); e('s_add_u32 s95, s95, s94'); e(f's_add_u32 s95, s95, {WS_Q}')
        e(f'v_lshlrev_b32 v{T+18}, 1, v{T+18}')
        e('s_movk_i32 s92, 0x2000'); e('s_movk_i32 s93, 0x4000'); e('s_movk_i32 s94, 0x6000')
        e('s_waitcnt lgkmcnt(0)'); e('s_barrier')
        e(f'ds_read_b64 {vr(T+4,2)}, v{T+28} offset:{L_STAT}')
        LN = T + 8
        e(f'v_lshlrev_b32 v{LN}, 16, v{XQ}'); e(f'v_and_b32 v{LN+1}, 0xffff0000, v{XQ}')
        e(f'v_lshlrev_b32 v{LN+2}, 16, v{XQ+1}'); e(f'v_and_b32 v{LN+3}, 0xffff0000, v{XQ+1}')
        SA, CA, SA2, CA2 = T + 20, T + 24, 16, 20
        sap = [f'buffer_load_dwordx4 {vr(r,4)}, v{T+18}, s[12:15], {so} offen sc1' for r, so in ((SA, '0'), (CA, 's92'), (SA2, 's93'), (CA2, 's94'))]
        for t_ in sap: e(t_)
        e('s_waitcnt lgkmcnt(0)')
        for i in range(4): e(f'v_sub_f32 v{LN+i}, v{LN+i}, v{T+4}')
        self.rbf2(LN, LN + 1, T + 2); self.rbf2(LN + 2, LN + 3, T + 3)
        for i in range(4): e(f'v_mul_f32 v{LN+i}, v{LN+i}, v{T+5}')
        self.rbf2(LN, LN + 1, T + 2); self.rbf2(LN + 2, LN + 3, T + 3)
        OPQ = lambda kap, m: (64 if kap == 0 else 192) + 4 * m
        for kap in range(2):
            e(f's_waitcnt vmcnt({12 - 8*kap})')
            for m in range(8): self.perm_op(OPQ(kap, m), [WQRAW + 32 * kap + 4 * x for x in range(8)], 4, m)
        self.stamp(22, VS)
        e('s_waitcnt vmcnt(0)')
        sregs = list(range(SA, SA + 8)) + list(range(SA2, SA2 + 8))
        ok = self.newlab('sok')
        self.sent_check(sregs, T)
        e(f's_cbranch_vccz {ok}')
        self.poll_data(sap, sregs, T, sleep=1)
        self.lab(ok)
        self.stamp(3, VS)
        for i in range(8): e(f'v_add_f32 v{SA+i}, v{SA+i}, v{SA2+i}')
        for i in range(0, 8, 2): self.rbf2(SA + i, SA + i + 1, T + (i >> 1))
        for i in range(4): e(f'v_add_f32 v{CA+i}, 1.0, v{CA+i}')
        self.rbf2(CA, CA + 1, T); self.rbf2(CA + 2, CA + 3, T + 1)
        for i in range(4): e(f'v_mul_f32 v{LN+i}, v{LN+i}, v{CA+i}')
        self.rbf2(LN, LN + 1, T); self.rbf2(LN + 2, LN + 3, T + 1)
        for i in range(4): e(f'v_add_f32 v{LN+i}, v{LN+i}, v{SA+i}')
        e(f'v_cvt_pk_bf16_f32 v{T}, v{LN}, v{LN+1}'); e(f'v_cvt_pk_bf16_f32 v{T+1}, v{LN+2}, v{LN+3}')
        e(f'ds_write_b64 v{T+19}, {vr(T,2)} offset:{L_SC}')
        e('s_waitcnt lgkmcnt(0)')
        AQ = T + 20
        e(f'ds_read_b128 {vr(AQ,4)}, v8 offset:{L_SC}'); e(f'ds_read_b128 {vr(AQ+4,4)}, v8 offset:{L_SC+64}')
        for kap in range(2):
            e(f's_waitcnt lgkmcnt({1-kap})')
            for m in range(8):
                c = '0' if kap == 0 else vr(ACC + 4 * m, 4)
                e(f'{MFMA} {vr(ACC+4*m,4)}, {vr(AQ+4*kap,4)}, {vr(OPQ(kap,m),4)}, {c}')
        self.red_write(ACC, 9)
        e('s_waitcnt lgkmcnt(0)'); e('s_barrier')
        l_noq = self.newlab('noq')
        e('s_cmp_ge_u32 s3, 4'); e(f's_cbranch_scc1 {l_noq}')
        for w in range(8): e(f'ds_read2st64_b32 {vr(ACC+2*w,2)}, v{QR} offset0:{8*w} offset1:{8*w+1}')
        e('s_waitcnt lgkmcnt(0)')
        for a, b in ((0, 1), (2, 3), (4, 5), (6, 7), (0, 2), (4, 6), (0, 4)):
            for h in range(2): e(f'v_add_f32 v{ACC+2*a+h}, v{ACC+2*a+h}, v{ACC+2*b+h}')
        e(f'v_cvt_pk_bf16_f32 v{ACC}, v{ACC}, v{ACC+1}')
        e(f'buffer_store_dword v{ACC}, v{QS}, s[12:15], s95 offen sc1')
        self.lab(l_noq)
        e('s_barrier')
        self.stamp(4, VS)
        e('s_mov_b32 s21, 6')
        e('s_add_u32 s23, s3, 1920'); e('s_lshl_b32 s23, s23, 10')
        self.attention(16, 8, 8192, 0, self.ldepth, True)

    def ebar(self):
        e = self.e
        if not self.dry:
            e('s_waitcnt lgkmcnt(0)'); e('s_barrier'); return
        l = self.newlab('eb')
        e('s_cmp_eq_u32 s14, 0')
        e('s_waitcnt lgkmcnt(0)')
        e(f's_cbranch_scc1 {l}')
        e('s_barrier')
        self.lab(l)

    def publish4(self, ACC, voff, soff):
        e = self.e
        for m in range(1, 4):
            for r in range(4): e(f'v_mov_b32_dpp v{ACC+r}, v{ACC+4*m+r} quad_perm:[0,1,2,3] row_mask:{hex(1 << m)} bank_mask:0xf')
        e(f'buffer_store_dwordx4 {vr(ACC,4)}, v{voff}, s[12:15], {soff} offen sc1')

    def stats_fast(self, xs, t0):
        e = self.e
        s1, s2, mean, var, t = t0, t0 + 1, t0 + 2, t0 + 3, t0 + 1
        d = [t0 + 4 + i for i in range(8)]
        e(f'v_readfirstlane_b32 s94, v{xs[0]}')
        for i in range(8): e(f'v_subrev_f32 v{d[i]}, s94, v{xs[i]}')
        e(f'v_add_f32 v{s1}, v{d[0]}, v{d[1]}'); e(f'v_mul_f32 v{s2}, v{d[0]}, v{d[0]}')
        e(f'v_add_f32 v{mean}, v{d[2]}, v{d[3]}'); e(f'v_mul_f32 v{var}, v{d[1]}, v{d[1]}')
        e(f'v_add_f32 v{s1}, v{s1}, v{d[4]}'); e(f'v_fmac_f32 v{s2}, v{d[2]}, v{d[2]}')
        e(f'v_add_f32 v{mean}, v{mean}, v{d[5]}'); e(f'v_fmac_f32 v{var}, v{d[3]}, v{d[3]}')
        e(f'v_add_f32 v{s1}, v{s1}, v{d[6]}'); e(f'v_fmac_f32 v{s2}, v{d[4]}, v{d[4]}')
        e(f'v_add_f32 v{mean}, v{mean}, v{d[7]}'); e(f'v_fmac_f32 v{var}, v{d[5]}, v{d[5]}')
        e(f'v_fmac_f32 v{s2}, v{d[6]}, v{d[6]}'); e(f'v_fmac_f32 v{var}, v{d[7]}, v{d[7]}')
        e(f'v_add_f32 v{s1}, v{s1}, v{mean}'); e(f'v_add_f32 v{s2}, v{s2}, v{var}')
        e(f'v_permlane16_swap_b32 v{s1}, v{s2}')
        e(f'v_add_f32 v{s1}, v{s1}, v{s2}')
        self.allred('v_add_f32', s1, t, 16)
        e(f'v_mov_b32 v{t}, v{s1}')
        e(f'v_permlane32_swap_b32 v{s1}, v{t}')
        e(f'v_add_f32 v{s1}, v{s1}, v{t}')
        e(f'v_mul_f32 v{s1}, 0x3b000000, v{s1}')
        e(f'v_readlane_b32 s95, v{s1}, 0'); e(f'v_readlane_b32 s96, v{s1}, 16')
        e(f'v_mov_b32 v{mean}, s95'); e(f'v_mov_b32 v{var}, s96')
        e(f'v_fma_f32 v{var}, -v{mean}, v{mean}, v{var}')
        e(f'v_add_f32 v{mean}, s94, v{mean}')
        e(f'v_max_f32 v{var}, 0, v{var}')
        self.rbf2(mean, var, t)
        e(f'v_add_f32 v{var}, 0x3727c5ac, v{var}')
        self.rbf(var, t)
        e(f'v_sqrt_f32 v{var}, v{var}')
        return mean, var

    def erole(self):
        e = self.e; vm = VM(e)
        ntw = ' nt' if self.nt_w else ''
        L_HB = L_SC
        assert L_ACT + 640 <= L_R2 and L_R2 % 256 == 0 and L_R2 + 2048 <= LDS_BYTES
        VS = 31; ACC = 32; PT = 16
        WO, GU, DN = 64, 192, 128
        MODRAW, T = 64, 96
        J, Gg = 2, 3
        XV, GA, GB, X2V = 12, 13, 14, 15
        e('s_sub_u32 s20, 31, s2')
        if self.codepf:
            e('s_getpc_b64 s[72:73]')
            self.lab('L_pc')
            e(f's_sub_u32 s72, s72, L_pc - {NAME}_kernel'); e('s_subb_u32 s73, s73, 0')
            e(f's_mov_b32 s74, L_exit - {NAME}_kernel'); e('s_mov_b32 s75, 0x20000')
            e('v_lshlrev_b32 v28, 4, v0')
            for i in range(self.codepf):
                e(f's_mov_b32 s24, {8192*i}')
                e(f'buffer_load_dwordx4 v[128:131], v28, s[72:75], s24 offen'); vm.issue('pf')
        self.common_lane(J, Gg)
        e('s_add_u32 s98, s20, 16')
        self.mod_addr(J, Gg, 's98')
        CV = T
        e(f's_mul_i32 s21, s20, {BLK_SZ}'); e(f's_add_u32 s21, s21, {WS_BLK}')
        for i in range(4): e(f'v_mov_b32 v{T+28+i}, -1')
        e(f'v_lshlrev_b32 v28, 4, v0')
        e('s_waitcnt lgkmcnt(0)')
        self.srd(12, 62, WS_BYTES); self.srd(16, 60, 256)
        l_nr = self.newlab('nr'); l_nf = self.newlab('nf')
        e('s_cmp_ge_u32 s2, 3'); e(f's_cbranch_scc1 {l_nr}')
        e('s_lshl_b32 s96, s2, 15')
        for i in range(4):
            e(f'buffer_store_dwordx4 {vr(T+28,4)}, v28, s[12:15], s96 offen sc1')
            e('s_add_u32 s96, s96, 8192')
        e('v_mov_b32 v29, 32'); e('s_lshl_b32 s96, s2, 2')
        e('s_waitcnt vmcnt(0)'); e('s_barrier')
        e('s_cmp_lg_u32 s3, 0'); e(f's_cbranch_scc1 {l_nr}')
        e('s_mov_b64 exec, 1')
        e(f'buffer_store_dword v29, off, s[16:19], s96 offset:{DBG_F} sc1')
        e('s_mov_b64 exec, -1')
        self.lab(l_nr)
        for i in range(4):
            e(f's_add_u32 s24, s21, {8192*i}')
            e(f'buffer_store_dwordx4 {vr(T+28,4)}, v28, s[12:15], s24 offen sc1'); vm.issue('clean')
        self.mod_loads(vm, CV, MODRAW)
        self.srd(88, 58, 4096); self.srd(64, 36, 4096)
        if self.stamps: e(f'v_mov_b32 v{VS}, 0')
        self.stamp(0, VS)
        e('v_mov_b32 v29, 1')
        vm.wait('clean')
        e('s_barrier')
        l_ns = self.newlab('ns')
        e('s_cmp_lg_u32 s3, 0'); e(f's_cbranch_scc1 {l_ns}')
        e('s_mov_b64 exec, 1')
        e(f'buffer_atomic_add v29, off, s[16:19], 0 offset:{DBG_C} sc1')
        e('s_mov_b64 exec, -1')
        self.lab(l_ns)
        self.stamp(4, VS)
        e('s_mov_b32 s27, 0x05040100'); e('s_mov_b32 s28, 0x07060302'); e(f's_mov_b32 s30, {hex(LOG2E)}')
        self.lds_addrs(J, Gg)
        self.silu_to_lds(vm, CV, T, 30, 29)
        e('s_waitcnt lgkmcnt(0)'); e('s_barrier')
        self.mod_mfma(vm, MODRAW, J, Gg, ACC, PT, VS)
        e(f'v_and_b32 v28, 3, v{J}'); e('v_lshlrev_b32 v28, 2, v28'); e(f'v_lshrrev_b32 v29, 2, v{J}'); e('v_add_u32 v28, v28, v29')
        e('v_lshl_add_u32 v7, v28, 1, v7')
        e('s_lshl_b32 s26, s20, 5')
        e('s_waitcnt lgkmcnt(0)'); e('s_barrier')
        l_w, l_ep = self.newlab('wts'), self.newlab('ep')
        e('s_cmp_lg_u32 s3, 0'); e(f's_cbranch_scc1 {l_w}')
        self.mod_reduce(MODRAW)
        e(f'v_cvt_pk_bf16_f32 v{MODRAW}, v{MODRAW}, v{MODRAW+1}'); e(f'v_cvt_pk_bf16_f32 v{MODRAW+1}, v{MODRAW+2}, v{MODRAW+3}')
        self.poll_counter(f'0 offset:{DBG_F + 4}', 32, 29, sleep=2)
        e('s_lshr_b32 s24, s98, 3'); e('s_lshl_b32 s24, s24, 12'); e('s_and_b32 s94, s98, 7'); e('s_lshl_b32 s94, s94, 7')
        e('s_add_u32 s24, s24, s94'); e(f's_add_u32 s24, s24, {WS_MOD}')
        e(f'buffer_store_dwordx2 {vr(MODRAW,2)}, v5, s[12:15], s24 offen sc1')
        self.stamp(2, VS)
        if self.dry:
            e('s_mov_b32 s14, 0'); e('s_mov_b32 s90, 0')
            e(f's_branch {l_ep}')
        self.lab(l_w)
        self.stamp(3, VS)
        self.srd(72, 44, 4096 * 1024); self.srd(76, 48, 512 * 3584); self.srd(80, 50, 512 * 3584); self.srd(84, 52, 1792 * 1024)
        RAW_WO, RAW_GU, RAW_DN = 192, 128, 32
        e(f'v_and_b32 v28, 1, v{Gg}'); e('v_lshlrev_b32 v28, 16, v28'); e(f'v_lshrrev_b32 v29, 1, v{Gg}'); e('v_lshl_add_u32 v28, v29, 10, v28')
        e(f'v_and_b32 v29, 8, v{J}'); e('v_lshl_add_u32 v28, v29, 8, v28')
        e(f'v_and_b32 v30, 7, v{J}'); e('v_lshlrev_b32 v30, 4, v30'); e('v_add_u32 v28, v28, v30')
        e('s_lshl_b32 s95, s20, 17'); e('s_add_u32 s95, s95, s29')
        for dt in range(2):
            for x in range(8):
                e(f's_add_u32 s24, s95, {(8*x + 4*dt)*1024}')
                e(f's_waitcnt vmcnt({self.wdepth})')
                e(f'buffer_load_dwordx4 {vr(RAW_WO+32*dt+4*x,4)}, v28, s[72:75], s24 offen{ntw}')
        e(f'buffer_load_ushort v{GA}, v7, s[88:91], s26 offen')
        e('s_cmp_lt_u32 s20, 28'); e('s_cselect_b32 s78, s78, 0'); e('s_cselect_b32 s82, s82, 0'); e('s_cselect_b32 s86, s86, 0')
        e(f'v_lshrrev_b32 v28, 1, v{Gg}'); e('v_lshlrev_b32 v28, 3, v28'); e(f'v_and_b32 v4, 1, v{Gg}'); e('v_add_u32 v28, v28, v4')
        e('v_lshl_add_u32 v28, v29, 1, v28')
        e(f'v_mul_u32_u24 v28, {2*3584}, v28'); e('v_add_u32 v28, v28, v30')
        e(f's_mul_i32 s22, s3, {64*3584}'); e('s_lshl_b32 s24, s20, 7'); e('s_add_u32 s22, s22, s24')
        for k, srd in enumerate(('s[76:79]', 's[80:83]')):
            for x in range(8):
                e(f's_add_u32 s24, s22, {(4*(x&3) + (x>>2))*3584}')
                e(f's_waitcnt vmcnt({self.wdepth})')
                e(f'buffer_load_dwordx4 {vr(RAW_GU+32*k+4*x,4)}, v28, {srd}, s24 offen{ntw}')
        e('v_lshl_add_u32 v4, v29, 12, v30'); e(f'v_lshl_add_u32 v4, v{Gg}, 13, v4')
        e('s_lshl_b32 s22, s20, 16'); e('s_add_u32 s22, s22, s29')
        for x in range(8):
            if x == 4: e('s_add_u32 s22, s22, 4096')
            e(f's_waitcnt vmcnt({self.wdepth})')
            e(f'buffer_load_dwordx4 {vr(RAW_DN+4*x,4)}, v4, s[84:87], s22 offen offset:{1024*(x&3)}{ntw}')
        e('s_waitcnt vmcnt(24)')
        self.half_swap([RAW_WO + 4 * x for x in range(16)], PT)
        for kap in range(4):
            for m in range(4): self.perm_op(WO + 16 * kap + 4 * m, [RAW_WO + 32 * (kap >> 1) + 4 * x + 2 * (kap & 1) for x in range(8)], 2, m)
        e('s_waitcnt vmcnt(8)')
        self.cross_swap(RAW_GU, RAW_GU + 32, 32, PT)
        for kap in range(2):
            for m in range(8): self.perm_op(GU + 32 * kap + 4 * m, [RAW_GU + 32 * kap + 4 * x for x in range(8)], 4, m)
        e('s_waitcnt vmcnt(0)')
        self.half_swap([RAW_DN + 4 * x for x in range(8)], PT)
        for kap in range(2):
            for m in range(4): self.perm_op(DN + 16 * kap + 4 * m, [RAW_DN + 4 * x + 2 * kap for x in range(8)], 2, m)
        self.stamp(5, VS)
        e('s_barrier')
        self.lab(l_ep)
        E = 160
        OCB, SBV = E, E + 4
        VACT_R, VL4, VYZ, VP0, VH2, VACT_W, VT = E + 8, E + 9, E + 10, E + 12, E + 15, E + 16, E + 17
        e(f'v_lshlrev_b32 v{VL4}, 2, v1')
        e('v_lshlrev_b32 v10, 2, v0')
        e('s_lshr_b32 s25, s3, 1'); e('s_and_b32 s23, s3, 1')
        e('v_lshrrev_b32 v28, 2, v1'); e('v_lshlrev_b32 v28, 5, v28'); e('v_and_b32 v29, 3, v1'); e('v_lshl_add_u32 v28, v29, 1, v28')
        e('s_lshl_b32 s92, s25, 10'); e('s_lshl_b32 s94, s23, 9'); e('s_add_u32 s92, s92, s94'); e(f's_add_u32 s92, s92, {WS_MOD + 3*4096}')
        e('s_add_u32 s93, s92, 4096'); e(f's_add_u32 s94, s26, {WS_MOD + 2*4096}'); e(f's_add_u32 s95, s26, {WS_MOD + 5*4096}')
        ml = [f'buffer_load_ushort v{SBV+i}, v28, s[12:15], s92 offen offset:{8*i} sc1' for i in range(4)]
        ml += [f'buffer_load_ushort v{OCB+i}, v28, s[12:15], s93 offen offset:{8*i} sc1' for i in range(4)]
        ml += [f'buffer_load_ushort v{GA}, v7, s[12:15], s94 offen sc1', f'buffer_load_ushort v{GB}, v7, s[12:15], s95 offen sc1']
        self.poll_data(ml, list(range(OCB, OCB + 8)) + [GA, GB], VT, sleep=8, sent='0xffff')
        e(f'buffer_load_ushort v{XV}, v7, s[64:67], s26 offen')
        e('s_lshl_b32 s24, s23, 10'); e('v_lshl_add_u32 v4, v1, 4, s24'); e('v_xor_b32 v6, 0x400, v4')
        e('s_lshl_b32 s22, s25, 11'); e(f's_add_u32 s22, s22, {WS_X2}')
        e('s_lshl_b32 s70, s20, 6'); e(f's_add_u32 s70, s70, {WS_X2}')
        VX2 = E + 14
        e(f'v_lshlrev_b32 v{VX2}, 11, v{Gg}'); e(f'v_lshl_add_u32 v{VX2}, v{J}, 2, v{VX2}')
        e('v_and_b32 v28, 7, v1'); e('v_cmp_gt_u32 s[100:101], 7, v28'); e('v_min_u32 v28, 6, v28'); e('v_lshlrev_b32 v28, 3, v28')
        e('s_lshl_b32 s71, s25, 6'); e('s_add_u32 s71, s71, s21'); e(f's_add_u32 s71, s71, {BLK_ML}')
        e('s_mul_i32 s99, s25, 3584'); e('s_lshl_b32 s24, s23, 8'); e('s_add_u32 s99, s99, s24'); e('s_add_u32 s99, s99, s21')
        e(f's_mul_i32 s24, s25, {OBS}'); e('s_lshl_b32 s94, s23, 7'); e('s_add_u32 s24, s24, s94'); e(f's_add_u32 s24, s24, {L_OB}')
        e('v_lshl_add_u32 v29, v1, 1, s24')
        e(f'v_and_b32 v30, 3, v1'); e(f'v_mul_u32_u24 v{VACT_R}, {ACS}, v30'); e(f'v_mul_u32_u24 v30, {OBS}, v30')
        e(f'v_lshl_add_u32 v30, v{Gg}, 4, v30'); e(f'v_lshl_add_u32 v{VACT_R}, v{Gg}, 4, v{VACT_R}')
        e(f'v_bfe_u32 v{VYZ}, v{J}, 1, 2'); e('s_lshl_b32 s24, s3, 2'); e(f'v_add_u32 v{VYZ}, s24, v{VYZ}'); e(f'v_lshlrev_b32 v{VYZ}, 15, v{VYZ}')
        e(f'v_and_b32 v{VT}, 1, v{J}'); e(f'v_lshl_add_u32 v{VYZ}, v{VT}, 5, v{VYZ}')
        e(f'v_and_b32 v{VT}, 8, v{J}'); e(f'v_lshl_add_u32 v{VYZ}, v{VT}, 1, v{VYZ}')
        e(f'v_lshl_add_u32 v{VYZ}, v{Gg}, 6, v{VYZ}')
        e('s_lshl_b32 s24, s20, 8'); e(f's_add_u32 s8, s24, {WS_BLK + BLK_Y}'); e(f's_add_u32 s9, s24, {WS_BLK + BLK_Z}')
        e('s_lshl_b32 s24, s3, 10'); e('s_add_u32 s24, s24, s21'); e(f's_add_u32 s68, s24, {BLK_Y}'); e(f's_add_u32 s69, s24, {BLK_Z}')
        e(f'v_lshlrev_b32 v{VP0}, 4, v1')
        e(f's_mul_i32 s24, s25, {SCS}'); e('s_lshl_b32 s94, s23, 9'); e('s_add_u32 s24, s24, s94'); e(f'v_lshl_add_u32 v{VH2}, v1, 3, s24')
        e(f'v_and_b32 v{VACT_W}, 3, v1'); e(f'v_mul_u32_u24 v{VACT_W}, {ACS}, v{VACT_W}'); e(f'v_bfe_u32 v{VT}, v1, 2, 3'); e(f'v_lshl_add_u32 v{VACT_W}, v{VT}, 4, v{VACT_W}')
        e('s_lshl_b32 s24, s3, 1'); e(f's_add_u32 s24, s24, {L_ACT}'); e(f'v_add_u32 v{VACT_W}, s24, v{VACT_W}')
        e('s_waitcnt vmcnt(0)')
        for r in [SBV, SBV + 1, SBV + 2, SBV + 3, OCB, OCB + 1, OCB + 2, OCB + 3, GA, GB, XV]: e(f'v_lshlrev_b32 v{r}, 16, v{r}')
        for i in range(4): e(f'v_add_f32 v{OCB+i}, 1.0, v{OCB+i}')
        self.rbf2(OCB, OCB + 1, VT); self.rbf2(OCB + 2, OCB + 3, VT)
        self.stamp(6, VS)
        MW = 16; M = 18; SC = 19; Ls = 20; T0 = 21
        self.poll_data([f'buffer_load_dwordx2 {vr(MW,2)}, v28, s[12:15], s71 offen sc1'], [MW, MW + 1], T0, sleep=2)
        self.stamp(7, VS)
        e(f'v_mov_b32 v{M}, v{MW}')
        self.allred('v_max_f32', M, T0, 8)
        e(f'v_sub_f32 v{SC}, v{MW}, v{M}'); e(f'v_mul_f32 v{SC}, s30, v{SC}'); e(f'v_exp_f32 v{SC}, v{SC}')
        e(f'v_cndmask_b32 v{SC}, 0, v{SC}, s[100:101]')
        e(f'v_mul_f32 v{Ls}, v{SC}, v{MW+1}')
        self.allred('v_add_f32', Ls, T0, 8)
        e(f'v_rcp_f32 v{Ls}, v{Ls}'); e(f'v_mul_f32 v{SC}, v{SC}, v{Ls}')
        for s in range(7): e(f'v_readlane_b32 s{92+s}, v{SC}, {s}')
        R = 16
        self.poll_data([f'buffer_load_dword v{R+s}, v{VL4}, s[12:15], s99 offen offset:{512*s} sc1' for s in range(7)], range(R, R + 7), R + 7)
        self.stamp(8, VS)
        e(f'v_mul_f32 v{R}, s92, v{R}'); e(f'v_mul_f32 v{R+1}, s93, v{R+1}')
        for s in range(2, 7): e(f'v_fmac_f32 v{R+(s&1)}, s{92+s}, v{R+s}')
        e(f'v_add_f32 v{R}, v{R}, v{R+1}')
        e(f'v_cvt_pk_bf16_f32 v{R}, v{R}, v{R}')
        e(f'ds_write_b16 v29, v{R}')
        self.ebar()
        AO = 48
        for kap in range(4): e(f'ds_read_b128 {vr(AO+4*kap,4)}, v30 offset:{L_OB + 64*kap}')
        for kap in range(4):
            e(f's_waitcnt lgkmcnt({3-kap})')
            for m in range(4):
                c = '0' if kap == 0 else vr(ACC + 4 * m, 4)
                e(f'{MFMA} {vr(ACC+4*m,4)}, {vr(AO+4*kap,4)}, {vr(WO+16*kap+4*m,4)}, {c}')
        self.publish4(ACC, VYZ, 's8')
        self.stamp(9, VS)
        l_e2b = self.newlab('e2b')
        R = ACC + 4
        self.sum_partials('s68', 8, R, VP0, 16, 10, VL4)
        e('s_cmp_lg_u32 s3, 0'); e(f's_cbranch_scc1 {l_e2b}')
        self.sum_finish(8, R, VL4)
        self.stamp(10, VS)
        self.rbf(R, 16)
        e(f'v_mul_f32 v{R}, v{GA}, v{R}'); self.rbf(R, 16)
        e(f'v_add_f32 v{X2V}, v{XV}, v{R}'); self.rbf(X2V, 16)
        e(f'buffer_store_dword v{X2V}, v{VX2}, s[12:15], s70 offen sc1')
        self.lab(l_e2b)
        l_e4 = self.newlab('e4')
        e('s_cmp_ge_u32 s20, 28'); e(f's_cbranch_scc1 {l_e4}')
        XS = 32
        self.poll_data([f'buffer_load_dwordx4 {vr(XS,4)}, v4, s[12:15], s22 offen sc1',
                        f'buffer_load_dwordx4 {vr(XS+4,4)}, v6, s[12:15], s22 offen sc1'], range(XS, XS + 8), 16)
        self.stamp(11, VS)
        mean, den = self.stats_fast(list(range(XS, XS + 8)), 16)
        for i in range(4): e(f'v_sub_f32 v{XS+i}, v{XS+i}, v{mean}')
        self.rbf(den, 17)
        e(f'v_rcp_f32 v{den}, v{den}')
        self.rbf2(XS, XS + 1, 20); self.rbf2(XS + 2, XS + 3, 21)
        for i in range(4): e(f'v_mul_f32 v{XS+i}, v{XS+i}, v{den}')
        self.rbf2(XS, XS + 1, 20); self.rbf2(XS + 2, XS + 3, 21)
        for i in range(4): e(f'v_mul_f32 v{XS+i}, v{XS+i}, v{OCB+i}')
        self.rbf2(XS, XS + 1, 20); self.rbf2(XS + 2, XS + 3, 21)
        for i in range(4): e(f'v_add_f32 v{XS+i}, v{XS+i}, v{SBV+i}')
        e(f'v_cvt_pk_bf16_f32 v{XS}, v{XS}, v{XS+1}'); e(f'v_cvt_pk_bf16_f32 v{XS+1}, v{XS+2}, v{XS+3}')
        e(f'ds_write_b64 v{VH2}, {vr(XS,2)} offset:{L_HB}')
        self.stamp(23, VS)
        self.ebar()
        AH = 16
        e(f'ds_read_b128 {vr(AH,4)}, v8 offset:{L_HB}'); e(f'ds_read_b128 {vr(AH+4,4)}, v8 offset:{L_HB+64}')
        for kap in range(2):
            e(f's_waitcnt lgkmcnt({1-kap})')
            for m in range(8):
                c = '0' if kap == 0 else vr(ACC + 4 * m, 4)
                e(f'{MFMA} {vr(ACC+4*m,4)}, {vr(AH+4*kap,4)}, {vr(GU+32*kap+4*m,4)}, {c}')
        self.red_write(ACC, 9)
        self.stamp(24, VS)
        self.ebar()
        R = 16
        for w in range(8): e(f'ds_read_b32 v{R+w}, v10 offset:{L_RED + 2048*w}')
        e('s_waitcnt lgkmcnt(0)')
        for a, b in ((0, 1), (2, 3), (4, 5), (6, 7), (0, 2), (4, 6), (0, 4)): e(f'v_add_f32 v{R+a}, v{R+a}, v{R+b}')
        self.rbf(R, R + 1)
        e(f'v_mov_b32 v{R+1}, v{R}')
        e(f'v_mul_f32 v{R+2}, v{R}, v{R}')
        e(f'v_mul_f32 v{R+2}, 0x3d372713, v{R+2}')
        e(f'v_fma_f32 v{R+2}, v{R+2}, v{R}, v{R}')
        e(f'v_mul_f32 v{R+2}, 0xc0135761, v{R+2}')
        e(f'v_exp_f32 v{R+2}, v{R+2}')
        e(f'v_permlane32_swap_b32 v{R}, v{R+1}')
        e(f'v_add_f32 v{R+2}, 1.0, v{R+2}')
        e(f'v_rcp_f32 v{R+2}, v{R+2}')
        e('s_mov_b32 exec_hi, 0')
        e(f'v_mul_f32 v{R}, v{R}, v{R+2}')
        self.rbf(R, R + 2)
        e(f'v_mul_f32 v{R}, v{R}, v{R+1}')
        e(f'v_cvt_pk_bf16_f32 v{R}, v{R}, v{R}')
        e(f'ds_write_b16 v{VACT_W}, v{R}')
        e('s_mov_b64 exec, -1')
        self.stamp(25, VS)
        self.ebar()
        e(f'ds_read_b128 {vr(AH,4)}, v{VACT_R} offset:{L_ACT}'); e(f'ds_read_b128 {vr(AH+4,4)}, v{VACT_R} offset:{L_ACT+64}')
        for kap in range(2):
            e(f's_waitcnt lgkmcnt({1-kap})')
            for m in range(4):
                c = '0' if kap == 0 else vr(ACC + 4 * m, 4)
                e(f'{MFMA} {vr(ACC+4*m,4)}, {vr(AH+4*kap,4)}, {vr(DN+16*kap+4*m,4)}, {c}')
        self.publish4(ACC, VYZ, 's9')
        self.stamp(12, VS)
        self.lab(l_e4)
        l_end = self.newlab('dend')
        R = ACC + 4
        self.sum_partials('s69', 7, R, VP0, 16, 10, VL4)
        e('s_cmp_lg_u32 s3, 0'); e(f's_cbranch_scc1 {l_end}')
        self.sum_finish(7, R, VL4)
        self.stamp(13, VS)
        self.rbf(R, 16)
        e(f'v_mul_f32 v{R}, v{GB}, v{R}'); self.rbf(R, 16)
        e(f'v_add_f32 v{R}, v{X2V}, v{R}')
        e(f'v_cvt_pk_bf16_f32 v{R}, v{R}, v{R}')
        e(f'buffer_store_short v{R}, v7, s[88:91], s26 offen')
        self.stamp(14, VS)
        if self.dry:
            e('s_cmp_eq_u32 s14, 0')
            e(f's_mov_b32 s14, {hex(WS_BYTES)}'); e('s_movk_i32 s90, 4096')
            e(f's_cbranch_scc1 {l_w}')
        self.lab(l_end)
        self.stamp_flush(VS, 16)
        e('s_endpgm')

    def build(self):
        e = self.e
        e('s_cmp_ge_u32 s2, 256'); e('s_cbranch_scc1 L_exit')
        e('s_load_dwordx16 s[36:51], s[0:1], 0')
        e('s_load_dwordx8 s[52:59], s[0:1], 64')
        e('s_load_dwordx4 s[60:63], s[0:1], 96')
        e('v_lshrrev_b32 v2, 6, v0'); e('v_and_b32 v1, 63, v0')
        e('v_readfirstlane_b32 s3, v2')
        e('s_cmp_lt_u32 s2, 32'); e('s_cbranch_scc1 L_erole')
        e('s_cmp_lt_u32 s2, 64'); e('s_cbranch_scc1 L_qrole')
        e('s_sub_u32 s24, s2, 64')
        e('s_mul_i32 s20, s24, 10923'); e('s_lshr_b32 s20, s20, 16')
        e('s_mul_i32 s21, s20, 6'); e('s_sub_u32 s21, s24, s21')
        e('s_mul_i32 s23, s3, 6'); e('s_add_u32 s23, s23, s21'); e('s_lshl_b32 s23, s23, 10')
        self.attention(40, self.npre, 48 * 1024, self.fpos, self.depth, False)
        self.lab('L_qrole')
        self.qrole()
        self.lab('L_erole')
        self.erole()
        self.lab('L_exit')
        e('s_endpgm')
        body = fix_hazards(self.L)
        out = [HEADER.rstrip('\n'),
               '; @launch grid=(256,1,1) block=(512,1,1) lds=%d' % LDS_BYTES,
               '.amdgcn_target "amdgcn-amd-amdhsa--gfx950"', '.text', f'.globl {NAME}_kernel', '.p2align 8',
               f'.type {NAME}_kernel,@function', f'{NAME}_kernel:'] + body + [
               '.section .rodata,"a"', '.p2align 6', f'.amdhsa_kernel {NAME}_kernel',
               '  .amdhsa_next_free_vgpr 256', '  .amdhsa_next_free_sgpr 102', '  .amdhsa_accum_offset 256',
               '  .amdhsa_group_segment_fixed_size 0', '  .amdhsa_kernarg_size 112', '  .amdhsa_user_sgpr_count 2',
               '  .amdhsa_user_sgpr_kernarg_segment_ptr 1', '  .amdhsa_system_sgpr_workgroup_id_x 1',
               '  .amdhsa_float_denorm_mode_32 3', '.end_amdhsa_kernel']
        return '\n'.join(out) + '\n'

if __name__ == '__main__':
    import argparse
    ap = argparse.ArgumentParser()
    ap.add_argument('-o', default='cdna_kernels/' + NAME + '.s')
    ap.add_argument('--stamps', action='store_true')
    ap.add_argument('--spin', type=int, default=1 << 17)
    ap.add_argument('--depth', type=int, default=4)
    ap.add_argument('--fpos', type=int, default=10)
    ap.add_argument('--dry', action='store_true')
    ap.add_argument('--wdepth', type=int, default=4)
    ap.add_argument('--codepf', type=int, default=0)
    ap.add_argument('--ldepth', type=int, default=6)
    ap.add_argument('--d0', type=int, default=2)
    ap.add_argument('--n0', type=int, default=24)
    a = ap.parse_args()
    open(a.o, 'w').write(G(stamps=a.stamps, spin=a.spin, depth=a.depth, fpos=a.fpos, dry=a.dry, d0=a.d0, n0=a.n0, wdepth=a.wdepth, codepf=a.codepf, ldepth=a.ldepth).build())
```
